```python
import torch

def _softmax(x, axis=-1):
    return torch.softmax(x, dim=axis)
def _gelu(x):
    return torch.nn.functional.gelu(x, approximate="tanh")
def _silu(x):
    return torch.nn.functional.silu(x)
def _sigmoid(x):
    return torch.sigmoid(x)
def _layernorm(x, axis=-1, eps=1e-5):
    m = x.mean(dim=axis, keepdim=True)
    v = x.var(dim=axis, keepdim=True, unbiased=False)
    return (x - m) / torch.sqrt(v + eps)
def _scatter_add(tgt, idx, src, axis=0):
    return tgt.clone().index_add_(axis, idx, src)
def _segment_sum(src, seg, n):
    out = torch.zeros((n,) + src.shape[1:], dtype=src.dtype)
    return out.index_add_(0, seg, src)
def _pad(x, pw):
    flat = tuple(v for pair in reversed(pw) for v in pair)
    return torch.nn.functional.pad(x, flat)

kernel_name = 'gated_mix__softmax_full_mha__glu_gated_geglu__prompt'

def setup_inputs():

    _w = (lambda a: (lambda t: t.to(torch.bfloat16) if t.is_floating_point() else t)(torch.as_tensor(a)))
    def _A_setup():
        B, S, D = 1, 2048, 640
        return {
            "x": _w((lambda *s: torch.randn(*s, dtype=torch.bfloat16) * 0.05)(B, S, D)),
            "wqkv": _w((lambda *s: torch.randn(*s, dtype=torch.bfloat16) * 0.8)(D, 3 * D)),
            "wo": _w((lambda *s: torch.randn(*s, dtype=torch.bfloat16) * 0.05)(D, D)),
        }
    _A_in = _A_setup()

    def _B_setup():
        B, S, Dm, Df = 1, 2048, 640, 1536
        return {
            "x": _w((lambda *s: torch.randn(*s, dtype=torch.bfloat16) * 0.05)(B, S, Dm)),
            "w_gate": _w((lambda *s: torch.randn(*s, dtype=torch.bfloat16) * 3.2)(Dm, Df) * (Dm ** -0.5)),
            "w_up": _w((lambda *s: torch.randn(*s, dtype=torch.bfloat16) * 3.2)(Dm, Df) * (Dm ** -0.5)),
            "w_down": _w((lambda *s: torch.randn(*s, dtype=torch.bfloat16) * 3.2)(Df, Dm) * (Df ** -0.5)),
        }
    _B_in = _B_setup()

    return {
        "A_x": _A_in["x"],
        "A_wqkv": _A_in["wqkv"],
        "A_wo": _A_in["wo"],
        "B_x": _B_in["x"],
        "B_w_gate": _B_in["w_gate"],
        "B_w_up": _B_in["w_up"],
        "B_w_down": _B_in["w_down"],
        "gate_w": _w((lambda *s: torch.randn(*s, dtype=torch.bfloat16) * 0.05)(640) * 16.0),
    }

def reference(A_x, A_wqkv, A_wo, B_x, B_w_gate, B_w_up, B_w_down, gate_w):
    def _A_ref(x, wqkv, wo):
        B, S, D = x.shape
        H = 32; Dh = D // H
        qkv = (lambda x, *d: x.permute(*d))((x @ wqkv).reshape(B, S, 3, H, Dh), 2, 0, 3, 1, 4)
        q, k, v = qkv[0], qkv[1], qkv[2]
        scale = Dh ** -0.5
        scores = torch.einsum("bhqd,bhkd->bhqk", q, k) * scale
        p = _softmax(scores, axis=-1)
        o = torch.einsum("bhqk,bhkd->bhqd", p, v)
        return (lambda x, *d: x.permute(*d))(o, 0, 2, 1, 3).reshape(B, S, D) @ wo

    def _B_ref(x, w_gate, w_up, w_down):
        g = torch.einsum("bsd,df->bsf", x, w_gate)
        u = torch.einsum("bsd,df->bsf", x, w_up)
        h = _gelu(g) * u
        return torch.einsum("bsf,fd->bsd", h, w_down)

    x = A_x
    g = _sigmoid((x * gate_w).sum(-1, keepdims=True))
    a = _A_ref(x, A_wqkv, A_wo)
    b = _B_ref(x, B_w_gate, B_w_up, B_w_down)
    return g * a + (1 - g) * b
```

```python
import math, struct

NAME = "gated_mix__softmax_full_mha__glu_gated_geglu__prompt"
WS_Q  = 0x0000000
WS_K  = 0x0280000
QK_EXTRA = 0x200000
WS_V  = 0x0500000
VHEAD = 64 * 1280
WS_ONES = WS_V + 32 * VHEAD
WS_H  = 0x0900000
WS_O  = 0x0F00000
WS_OE = WS_O + 0x200000
WS_WD = 0x1180000
WS_WO = WS_WD + 1920 * 1024
WS_G  = 0x1480000
WS_B  = 0x1500000
WS_SIZE = 0x2000000

def f2u(x):
    return struct.unpack("<I", struct.pack("<f", x))[0]

LOG2E = 1.4426950408889634
QSCALE = LOG2E / math.sqrt(20.0)

class Asm:
    def __init__(self):
        self.L = []
    def __call__(self, s, *a):
        for line in s.split("\n"):
            line = line.strip()
            if not line: continue
            if line.endswith(":") or line.startswith("."):
                self.L.append(line)
            else:
                self.L.append("    " + line)
    def c(self, s):
        self.L.append("    ; " + s)
    def text(self):
        return "\n".join(self.L) + "\n"

def vr(a, n=1):
    return f"v{a}" if n == 1 else f"v[{a}:{a+n-1}]"
def sr(a, n=1):
    return f"s{a}" if n == 1 else f"s[{a}:{a+n-1}]"

def kernel_header(A, name):
    A(f""".text
.globl {name}
.p2align 8
.type {name},@function
{name}:""")

def kernel_desc(A, name, nvgpr, nsgpr=96):
    acc = (nvgpr + 3) // 4 * 4
    A.L.append(f""".section .rodata,"a"
.p2align 6
.amdhsa_kernel {name}
  .amdhsa_next_free_vgpr {nvgpr}
  .amdhsa_next_free_sgpr {nsgpr}
  .amdhsa_accum_offset {acc}
  .amdhsa_group_segment_fixed_size 0
  .amdhsa_kernarg_size 88
  .amdhsa_user_sgpr_count 2
  .amdhsa_user_sgpr_kernarg_segment_ptr 1
  .amdhsa_system_sgpr_workgroup_id_x 1
.end_amdhsa_kernel""")

def srd(A, d, base, nbytes):
    A(f"s_mov_b32 s{d}, s{base}")
    A(f"s_mov_b32 s{d+1}, s{base+1}")
    A(f"s_mov_b32 s{d+2}, {nbytes:#x}")
    A(f"s_mov_b32 s{d+3}, 0x00020000")

WS_DBG = 0x1C00000
import os
STAMP = bool(int(os.environ.get("STAMP", "0")))
def stamp(A, i):
    if STAMP:
        A(f"s_memtime s[{70+2*i}:{71+2*i}]")
def stamp_rt(A, i):
    if STAMP:
        A(f"s_memrealtime s[{70+2*i}:{71+2*i}]")
def stamp_store(A, n, wave_sgpr, kidx, srd=28, vt=250):
    if not STAMP: return
    A("s_waitcnt lgkmcnt(0)")
    A(f"s_lshl_b32 s68, s2, 4")
    A(f"s_add_u32 s68, s68, s{wave_sgpr}")
    A(f"s_lshl_b32 s68, s68, 6")
    A(f"s_add_u32 s68, s68, {WS_DBG + kidx*0x40000:#x}")
    A(f"v_mov_b32 v{vt}, 0")
    for i in range(n):
        A(f"v_mov_b32 v{vt+1}, s{70+2*i}")
        A(f"buffer_store_dword v{vt+1}, v{vt}, s[{srd}:{srd+3}], s68 offen offset:{4*i}")
        A("s_nop 1")
```

```python
from common import *

STAGE = 53376
XB = 32768
K1_LDS = 3 * STAGE
ACC0 = 96
def acc(rt, t): return ACC0 + (rt * 5 + t) * 16
def xf(buf, rt): return 16 + (buf * 2 + rt) * 4
def wf(buf, t): return 32 + (buf * 5 + t) * 4
XA = 4
WA = 8
WA2 = 9
V_LANE = 1
V_HH = 2
V_NH = 3

def emit_reads(kind, buf, ks, nt):
    R = []
    for rt in range(2):
        R.append(f"ds_read_b128 {vr(xf(buf, rt), 4)}, v{XA + ks} offset:{rt * 4096}")
    for t in range(nt):
        for j2 in range(2):
            wa = WA
            if kind == "GU":
                off = ks * 2560 + j2 * 640 + t * 32
            else:
                off = ks * 5120 + j2 * 1280 + (t * 80 if t < 4 else 0)
                if t == 4: wa = WA2
            R.append(f"ds_read_b64_tr_b16 {vr(wf(buf, t) + 2 * j2, 2)}, v{wa} offset:{off}")
    order = [R[0], R[2], R[3], R[1]] + R[4:]
    return order

def consumer_loop(A, kind, lab, nt=5, gate=False):
    lay = "GU" if kind == "GU" else "QK"
    A("s_barrier")
    stamp(A, 1)
    for r in emit_reads(lay, 0, 0, nt): A(r)
    if gate:
        A(f"buffer_load_dwordx4 v[72:75], v80, s[32:35], 0 offen")
        A("s_mov_b32 s46, 32")
    A("s_mov_b32 s44, 0")
    A(".p2align 6")
    A(f"{lab}:")
    for ks in range(4):
        buf = ks & 1
        nks = (ks + 1) & 3
        reads = emit_reads(lay, buf ^ 1, nks, nt)
        mf = []
        for t in range(nt):
            for rt in range(2):
                a = acc(rt, t)
                if kind == "V":
                    mf.append(f"v_mfma_f32_32x32x16_bf16 {vr(a,16)}, {vr(xf(buf,rt),4)}, {vr(wf(buf,t),4)}, {vr(a,16)}")
                else:
                    mf.append(f"v_mfma_f32_32x32x16_bf16 {vr(a,16)}, {vr(wf(buf,t),4)}, {vr(xf(buf,rt),4)}, {vr(a,16)}")
        A("s_waitcnt lgkmcnt(0)")
        if gate:
            gb, gn = 72 + 4 * buf, 72 + 4 * (buf ^ 1)
            A("s_waitcnt vmcnt(0)")
            A(f"buffer_load_dwordx4 {vr(gn,4)}, v80, s[32:35], s46 offen")
            A("s_add_u32 s46, s46, 32")
            for rt in range(2):
                for i in range(4):
                    A(f"v_dot2_f32_bf16 v{82 + rt * 2 + (i & 1)}, v{xf(buf, rt) + i}, v{gb + i}, v{82 + rt * 2 + (i & 1)}")
        start = 0
        if ks == 3:
            A(mf[0])
            A("s_cmp_eq_u32 s45, 2")
            A(f"s_mov_b32 s47, {STAGE}")
            A(f"s_cmov_b32 s47, {(-2 * STAGE) & 0xffffffff:#x}")
            A("s_add_u32 s45, s45, 1")
            A("s_cmp_eq_u32 s45, 3")
            A("s_cselect_b32 s45, 0, s45")
            for i in range(4): A(f"v_add_u32 v{XA+i}, s47, v{XA+i}")
            A(f"v_add_u32 v{WA}, s47, v{WA}")
            if lay != "GU": A(f"v_add_u32 v{WA2}, s47, v{WA2}")
            A("s_barrier")
            start = 1
        ri = 0
        n = len(mf) - start
        per = [0] * n
        k = 0
        for g in range(n):
            take = min(2, len(reads) - k) if nt == 5 else len(reads) - k
            per[g] = take; k += take
        k = 0
        for g in range(n):
            A(mf[start + g])
            for _ in range(per[g]):
                A(reads[k]); k += 1
    A("s_add_u32 s44, s44, 1")
    A("s_cmp_lt_u32 s44, 10")
    A(f"s_cbranch_scc1 {lab}")
    A("s_waitcnt lgkmcnt(0) vmcnt(0)")
    A("s_nop 15")
    stamp(A, 2)

def gen_k1(A):
    name = "k1_kernel"
    kernel_header(A, name)
    stamp(A, 0)
    stamp_rt(A, 4)
    def fin():
        stamp(A, 7)
        if STAMP: A("s_waitcnt vmcnt(0)")
        stamp(A, 3)
        stamp_rt(A, 5)
        stamp_store(A, 9, 36, 0, vt=92)
        A("s_endpgm")
    A("""
    s_cmp_ge_u32 s2, 256
    s_cbranch_scc1 K1_END
    s_load_dwordx4 s[4:7], s[0:1], 0
    s_load_dwordx2 s[8:9], s[0:1], 16
    s_load_dwordx8 s[12:19], s[0:1], 32
    s_load_dwordx2 s[10:11], s[0:1], 80
    v_lshrrev_b32 v1, 6, v0
    s_and_b32 s39, s2, 7
    v_readfirstlane_b32 s36, v1
    v_and_b32 v1, 63, v0
    s_lshr_b32 s40, s2, 3
    s_lshr_b32 s37, s39, 2
    s_lshl_b32 s37, s37, 2
    s_and_b32 s41, s40, 3
    s_add_u32 s37, s37, s41
    s_and_b32 s38, s39, 3
    s_lshl_b32 s38, s38, 3
    s_lshr_b32 s41, s40, 2
    s_add_u32 s38, s38, s41
    v_lshrrev_b32 v2, 5, v1
    v_sub_u32 v3, 1, v2
    s_waitcnt lgkmcnt(0)
    """)
    stamp(A, 6)
    srd(A, 20, 4, 2048 * 1280)
    srd(A, 28, 10, WS_SIZE)
    A("""
    s_cmp_ge_u32 s36, 4
    s_cbranch_scc1 K1_LOADER
    """)
    A.c("x frag addresses: row = 64w + (l&31); addr = row*128 + (((2ks+kh) ^ ((row>>1)&7))<<4)")
    A("""
    v_and_b32 v9, 31, v1
    v_lshrrev_b32 v10, 1, v9
    v_and_b32 v10, 7, v10
    v_xor_b32 v10, v10, v2
    s_lshl_b32 s40, s36, 13
    v_lshlrev_b32 v11, 7, v9
    v_add_u32 v11, s40, v11
    """)
    for ks in range(4):
        A(f"v_xor_b32 v12, {2*ks}, v10")
        A(f"v_lshl_add_u32 v{XA+ks}, v12, 4, v11")
    A.c("W frag address pieces: r=(l>>2)&3, c=l&3, colhalf=(l>>4)&1, khalf=hh")
    A("""
    v_lshrrev_b32 v12, 2, v1
    v_and_b32 v12, 3, v12
    v_lshl_add_u32 v12, v2, 3, v12
    v_and_b32 v13, 3, v1
    v_lshrrev_b32 v14, 4, v1
    v_and_b32 v14, 1, v14
    s_mov_b32 s45, 0
    """)
    for i in range(160): A(f"v_mov_b32 v{ACC0+i}, 0")
    A(f"""
    s_cmp_ge_u32 s38, 12
    s_cbranch_scc1 K1_GU
    v_mul_u32_u24 v12, 320, v12
    v_add_u32 v12, {XB + 32}, v12
    v_mul_u32_u24 v15, 160, v14
    v_add_u32 v15, v15, v12
    v_mul_u32_u24 v10, 40, v13
    v_add_u32 v{WA2}, v15, v10
    v_mul_u32_u24 v15, 40, v14
    v_add_u32 v12, v15, v12
    v_subrev_u32 v12, 32, v12
    s_cmp_ge_u32 s38, 8
    s_cbranch_scc1 K1_V
    v_and_b32 v14, 1, v13
    v_lshl_add_u32 v12, v14, 4, v12
    v_lshrrev_b32 v14, 1, v13
    v_lshl_add_u32 v{WA}, v14, 3, v12
    """)
    consumer_loop(A, "QK", "K1_QK_LOOP")
    A.c("QK epilogue: main frags [head][T][lane][16B]; extras [head][T/2][tok][rt0 8B|rt1 8B]")
    A(f"""
    s_cmp_lt_u32 s38, 4
    s_cselect_b32 s50, {f2u(QSCALE):#x}, 1.0
    s_mov_b32 s51, s50
    s_cselect_b32 s52, {WS_Q:#x}, {WS_K:#x}
    s_and_b32 s53, s38, 3
    s_lshl_b32 s54, s37, 3
    s_lshl_b32 s55, s36, 1
    s_add_u32 s54, s54, s55
    s_lshl_b32 s55, s53, 19
    s_add_u32 s55, s55, s52
    s_lshl_b32 s56, s54, 10
    s_add_u32 s55, s55, s56
    s_lshl_b32 s56, s53, 17
    s_add_u32 s56, s56, s52
    s_add_u32 s56, s56, {QK_EXTRA:#x}
    s_lshl_b32 s57, s54, 8
    s_add_u32 s56, s56, s57
    v_lshlrev_b32 v10, 4, v1
    v_and_b32 v11, 31, v1
    v_lshlrev_b32 v11, 4, v11
    v_lshl_add_u32 v11, v2, 14, v11
    """)
    tmp = 16
    for t in range(4):
        for hp in range(2):
            A(f"s_add_u32 s59, s55, {(2*t+hp)*65536:#x}")
            for rt in range(2):
                r0 = acc(rt, t) + 8 * hp
                d = tmp; tmp = 16 + (tmp - 16 + 4) % 48
                for i in range(4):
                    A(f"v_pk_mul_f32 {vr(r0+2*i,2)}, {vr(r0+2*i,2)}, s[50:51]")
                for i in range(4):
                    A(f"v_cvt_pk_bf16_f32 v{d+i}, v{r0+2*i}, v{r0+2*i+1}")
                A(f"buffer_store_dwordx4 {vr(d,4)}, v10, s[28:31], s59 offen offset:{rt*1024}")
    for a in range(4):
        A(f"s_add_u32 s59, s56, {2*a*16384:#x}")
        d = tmp; tmp = 16 + (tmp - 16 + 4) % 48
        for rt in range(2):
            r0 = acc(rt, 4) + 4 * a
            for i in range(2):
                A(f"v_pk_mul_f32 {vr(r0+2*i,2)}, {vr(r0+2*i,2)}, s[50:51]")
            for i in range(2):
                A(f"v_cvt_pk_bf16_f32 v{d+2*rt+i}, v{r0+2*i}, v{r0+2*i+1}")
        A(f"buffer_store_dwordx4 {vr(d,4)}, v11, s[28:31], s59 offen")
    fin()
    A("K1_V:")
    A(f"v_lshl_add_u32 v{WA}, v13, 3, v12")
    consumer_loop(A, "V", "K1_V_LOOP")
    A.c("V epilogue: block per (head,T,f) = 640B: [hh0 d0-15][hh1 d0-15][hh0 d16-19][hh1 d16-19]")
    A(f"""
    s_and_b32 s53, s38, 3
    s_mul_i32 s55, s53, {8*VHEAD}
    s_add_u32 s55, s55, {WS_V:#x}
    s_lshl_b32 s54, s37, 3
    s_lshl_b32 s56, s36, 1
    s_add_u32 s54, s54, s56
    s_mul_i32 s54, s54, 1280
    s_add_u32 s55, s55, s54
    v_and_b32 v10, 15, v1
    v_lshlrev_b32 v10, 4, v10
    v_lshl_add_u32 v10, v2, 8, v10
    v_lshrrev_b32 v11, 4, v1
    v_and_b32 v11, 1, v11
    s_mov_b32 s57, {VHEAD}
    v_mad_u32_u24 v10, v11, s57, v10
    v_and_b32 v11, 3, v1
    v_lshlrev_b32 v11, 4, v11
    v_lshl_add_u32 v11, v2, 6, v11
    v_lshrrev_b32 v12, 2, v1
    v_and_b32 v12, 7, v12
    v_mad_u32_u24 v11, v12, s57, v11
    """)
    tmp = 16
    for t in range(5):
        A(f"s_add_u32 s59, s55, {(2*t*VHEAD if t < 4 else 512):#x}")
        for rt in range(2):
            for f in range(2):
                r0 = acc(rt, t) + 8 * f
                d = tmp; tmp = 16 + (tmp - 16 + 4) % 48
                for i in range(4):
                    A(f"v_cvt_pk_bf16_f32 v{d+i}, v{r0+2*i}, v{r0+2*i+1}")
                A(f"buffer_store_dwordx4 {vr(d,4)}, v{10 if t < 4 else 11}, s[28:31], s59 offen offset:{rt*1280+f*640}")
    fin()
    A("K1_GU:")
    A.c("foff = {0,8,4,12}[c] -> bytes {0,16,8,24} = ((c&1)<<4) | ((c>>1)<<3)")
    A(f"""
    v_mul_u32_u24 v12, 160, v12
    v_mul_u32_u24 v14, 10368, v14
    v_add_u32 v12, v12, v14
    v_and_b32 v14, 1, v13
    v_lshl_add_u32 v12, v14, 4, v12
    v_lshrrev_b32 v14, 1, v13
    v_lshl_add_u32 v12, v14, 3, v12
    v_add_u32 v{WA}, {XB}, v12
    s_cmp_eq_u32 s38, 31
    s_cbranch_scc1 K1_GUG
    """)
    consumer_loop(A, "GU", "K1_GU_LOOP")
    def gu_epilogue(nt):
        C0 = -2.0 * LOG2E * math.sqrt(2.0 / math.pi)
        C1 = C0 * 0.044715
        A(f"""
        s_mov_b32 s50, {f2u(C1):#x}
        s_mov_b32 s51, {f2u(C1):#x}
        v_mov_b32 v10, {f2u(C0):#x}
        v_mov_b32 v11, {f2u(C0):#x}
        s_lshl_b32 s54, s37, 3
        s_lshl_b32 s56, s36, 1
        s_add_u32 s54, s54, s56
        s_mul_i32 s54, s54, 96
        s_sub_u32 s55, s38, 12
        s_mul_i32 s55, s55, 5
        s_add_u32 s54, s54, s55
        s_lshl_b32 s54, s54, 10
        s_add_u32 s55, s54, {WS_H:#x}
        s_add_u32 s56, s55, {96*1024}
        s_add_u32 s57, s55, 4096
        s_add_u32 s58, s56, 4096
        v_lshlrev_b32 v9, 4, v1
        """)
        tmp = 16
        for rt in range(2):
            for t in range(nt):
                g0 = acc(rt, t); u0 = g0 + 8
                z = 64
                d = tmp; tmp = 16 + (tmp - 16 + 4) % 48
                for p in range(4):
                    A(f"v_pk_mul_f32 {vr(z+2*p,2)}, {vr(g0+2*p,2)}, {vr(g0+2*p,2)}")
                for p in range(4):
                    A(f"v_pk_fma_f32 {vr(z+2*p,2)}, {vr(z+2*p,2)}, s[50:51], v[10:11]")
                for p in range(4):
                    A(f"v_pk_mul_f32 {vr(z+2*p,2)}, {vr(z+2*p,2)}, {vr(g0+2*p,2)}")
                for i in range(8):
                    A(f"v_exp_f32 v{z+i}, v{z+i}")
                for p in range(4):
                    A(f"v_pk_mul_f32 {vr(u0+2*p,2)}, {vr(u0+2*p,2)}, {vr(g0+2*p,2)}")
                for p in range(4):
                    A(f"v_pk_add_f32 {vr(z+2*p,2)}, {vr(z+2*p,2)}, 1.0 op_sel_hi:[1,0]")
                for i in range(8):
                    A(f"v_rcp_f32 v{z+i}, v{z+i}")
                A("s_nop 0")
                for p in range(4):
                    A(f"v_pk_mul_f32 {vr(u0+2*p,2)}, {vr(u0+2*p,2)}, {vr(z+2*p,2)}")
                for p in range(4):
                    A(f"v_cvt_pk_bf16_f32 v{d+p}, v{u0+2*p}, v{u0+2*p+1}")
                if t < 4:
                    A(f"buffer_store_dwordx4 {vr(d,4)}, v9, s[28:31], s{55+rt} offen offset:{t*1024}")
                else:
                    A(f"buffer_store_dwordx4 {vr(d,4)}, v9, s[28:31], s{57+rt} offen")
    gu_epilogue(5)
    fin()
    A("K1_GUG:")
    srd(A, 32, 18, 1280)
    A("""
    v_lshlrev_b32 v80, 4, v2
    v_mov_b32 v82, 0
    v_mov_b32 v83, 0
    v_mov_b32 v84, 0
    v_mov_b32 v85, 0
    """)
    consumer_loop(A, "GU", "K1_GUG_LOOP", nt=1, gate=True)
    A.c("gate: sum halves, round to bf16, sigmoid, round; lanes<32 -> rt0, lanes>=32 -> rt1")
    A(f"""
    v_add_f32 v82, v82, v83
    v_add_f32 v84, v84, v85
    s_nop 1
    v_permlane32_swap_b32 v82, v84
    s_nop 1
    v_add_f32 v82, v82, v84
    v_cvt_pk_bf16_f32 v82, v82, v82
    v_and_b32 v82, 0xffff0000, v82
    v_mul_f32 v82, {f2u(-LOG2E):#x}, v82
    v_exp_f32 v82, v82
    s_nop 0
    v_add_f32 v82, 1.0, v82
    v_rcp_f32 v82, v82
    s_nop 0
    v_cvt_pk_bf16_f32 v82, v82, v82
    v_and_b32 v82, 0xffff0000, v82
    v_sub_f32 v83, 1.0, v82
    v_cvt_pk_bf16_f32 v83, v83, v83
    v_and_b32 v83, 0xffff0000, v83
    s_lshl_b32 s54, s37, 10
    s_lshl_b32 s55, s36, 8
    s_add_u32 s54, s54, s55
    s_add_u32 s54, s54, {WS_G:#x}
    s_add_u32 s55, s54, 8192
    v_lshlrev_b32 v86, 2, v1
    buffer_store_dword v82, v86, s[28:31], s54 offen
    buffer_store_dword v83, v86, s[28:31], s55 offen
    """)
    A.c("ones region (8KB): wave w of block r writes 256B... every GUG wave writes 1KB: (r*4+w)&7")
    A(f"""
    v_mov_b32 v88, 0x3f803f80
    v_mov_b32 v89, 0x3f803f80
    v_mov_b32 v90, 0x3f803f80
    v_mov_b32 v91, 0x3f803f80
    s_and_b32 s54, s37, 1
    s_lshl_b32 s54, s54, 2
    s_add_u32 s54, s54, s36
    s_lshl_b32 s54, s54, 10
    s_add_u32 s54, s54, {WS_ONES:#x}
    v_lshlrev_b32 v87, 4, v1
    buffer_store_dwordx4 v[88:91], v87, s[28:31], s54 offen
    """)
    gu_epilogue(1)
    fin()

    A("K1_LOADER:")
    A(f"""
    s_sub_u32 s40, s36, 4
    v_lshrrev_b32 v4, 3, v1
    s_lshl_b32 s41, s40, 6
    v_add_u32 v4, s41, v4
    v_mul_u32_u24 v4, 1280, v4
    v_and_b32 v5, 7, v1
    v_lshrrev_b32 v6, 4, v1
    v_xor_b32 v5, v5, v6
    v_lshl_add_u32 v10, v5, 4, v4
    v_xor_b32 v11, 64, v10
    s_mul_i32 s41, s37, {256*1280}
    s_lshl_b32 s48, s40, 13
    s_cmp_ge_u32 s38, 12
    s_cbranch_scc1 K1_LD_GU
    s_mov_b32 s24, s6
    s_mov_b32 s25, s7
    s_mov_b32 s26, {640*3840}
    s_movk_i32 s50, 3277
    s_movk_i32 s51, 20
    s_movk_i32 s52, 3840
    s_mul_i32 s53, s40, 320
    s_mul_i32 s42, s38, 320
    s_mov_b32 s54, {64*3840}
    s_mul_i32 s49, s40, 5120
    s_branch K1_LD_COMMON
    K1_LD_GU:
    s_cmp_lt_u32 s40, 2
    s_cselect_b32 s24, s12, s14
    s_cselect_b32 s25, s13, s15
    s_mov_b32 s26, {640*3072}
    s_movk_i32 s50, 6554
    s_movk_i32 s51, 10
    s_movk_i32 s52, 3072
    s_and_b32 s55, s40, 1
    s_mul_i32 s53, s55, 320
    s_sub_u32 s42, s38, 12
    s_mul_i32 s42, s42, 160
    s_mov_b32 s54, {64*3072}
    s_mul_i32 s49, s55, 5120
    s_lshr_b32 s55, s40, 1
    s_mul_i32 s55, s55, 10368
    s_add_u32 s49, s49, s55
    K1_LD_COMMON:
    s_mov_b32 s27, 0x00020000
    s_add_u32 s49, s49, {XB}
    """)
    for i in range(5):
        A(f"""
        v_add_u32 v4, s53, v1
        v_add_u32 v4, {64*i}, v4
        v_mul_lo_u32 v5, v4, s50
        v_lshrrev_b32 v5, 16, v5
        v_mul_lo_u32 v6, v5, s51
        v_sub_u32 v6, v4, v6
        v_mul_lo_u32 v5, v5, s52
        v_lshl_add_u32 v{12+i}, v6, 4, v5
        """)
    A("s_mov_b32 s43, 0")
    def issue():
        A("s_add_u32 s56, s43, s49")
        for i in range(5):
            A(f"s_add_u32 m0, s56, {i*1024}")
            A("s_nop 0")
            A(f"buffer_load_dwordx4 v{12+i}, s[24:27], s42 offen lds")
        A("s_add_u32 s56, s43, s48")
        for i in range(8):
            A(f"s_add_u32 m0, s56, {i*1024}")
            A(f"s_add_u32 s57, s41, {i*10240}")
            A(f"buffer_load_dwordx4 v{10+(i&1)}, s[20:23], s57 offen lds")
        A(f"""
        s_add_u32 s41, s41, 128
        s_add_u32 s42, s42, s54
        s_add_u32 s43, s43, {STAGE}
        s_cmp_eq_u32 s43, {3*STAGE}
        s_cselect_b32 s43, 0, s43
        """)
    A("s_mov_b32 s44, 0")
    stamp(A, 7)
    A("K1_LD_PRO:")
    issue()
    A("""
    s_add_u32 s44, s44, 1
    s_cmp_lt_u32 s44, 2
    s_cbranch_scc1 K1_LD_PRO
    """)
    stamp(A, 8)
    A("""
    s_mov_b32 s44, 0
    K1_LD_LOOP:
    s_waitcnt vmcnt(13)
    s_barrier
    """)
    if STAMP:
        A("s_cmp_lg_u32 s44, 0")
        A("s_cbranch_scc1 K1_LD_NOST")
        stamp(A, 1)
        A("K1_LD_NOST:")
    issue()
    A("""
    s_add_u32 s44, s44, 1
    s_cmp_lt_u32 s44, 8
    s_cbranch_scc1 K1_LD_LOOP
    s_waitcnt vmcnt(13)
    s_barrier
    """)
    A.c("weight re-layout job: frag F = wg*4+lw + 1024*n  (F < 2720)")
    A(f"""
    v_and_b32 v4, 31, v1
    v_lshlrev_b32 v4, 1, v4
    v_lshlrev_b32 v5, 4, v1
    s_lshl_b32 s58, s2, 2
    s_add_u32 s58, s58, s40
    s_mov_b32 s35, 0x00020000
    """)
    for n in range(3):
        A(f"""
        s_add_u32 s59, s58, {1024*n}
        s_min_u32 s59, s59, 2719
        s_cmp_lt_u32 s59, 1920
        s_cselect_b32 s32, s16, s8
        s_cselect_b32 s33, s17, s9
        s_mov_b32 s34, {640*1280}
        s_cmov_b32 s34, {1536*1280}
        s_cselect_b32 s60, 0, 1920
        s_cselect_b32 s61, 96, 40
        s_mov_b32 s62, {(1<<32)//40+1:#x}
        s_cmov_b32 s62, {(1<<32)//96+1:#x}
        s_cselect_b32 s67, 16, 20
        s_cselect_b32 s50, 8, 4
        s_cselect_b32 s51, 4, 8
        s_cselect_b32 s52, 1000, 32
        s_sub_u32 s60, s59, s60
        s_mul_hi_u32 s63, s60, s62
        s_mul_i32 s61, s63, s61
        s_sub_u32 s60, s60, s61
        s_mul_i32 s61, s60, s67
        s_mul_i32 s53, s60, 80
        s_sub_u32 s53, s53, {32*80-16}
        s_cmp_ge_u32 s60, s52
        s_cselect_b32 s61, s53, s61
        s_cselect_b32 s50, 40, s50
        s_cselect_b32 s51, 20, s51
        s_mul_i32 s60, s61, 1280
        s_lshl_b32 s63, s63, 6
        s_add_u32 s60, s60, s63
        s_mul_i32 s61, s51, 1280
        s_add_u32 s61, s61, s60
        s_mul_i32 s50, s50, 1280
        v_mad_u32_u24 v{6+n}, v2, s50, v4
        s_lshl_b32 s{64+n}, s59, 10
        s_add_u32 s{64+n}, s{64+n}, {WS_WD:#x}
        """)
        for j in range(8):
            reg = 20 + 8 * n + j // 2 + 4 * (j & 1)
            A(f"buffer_load_ushort v{reg}, v{6+n}, s[32:35], s{60 + j // 4} offen offset:{(j % 4) * 1280}")
    A("""
    s_waitcnt vmcnt(24)
    s_barrier
    s_barrier
    """)
    stamp(A, 2)
    A("s_waitcnt vmcnt(0)")
    for n in range(3):
        for i in range(4):
            A(f"v_lshl_or_b32 v{20+8*n+i}, v{24+8*n+i}, 16, v{20+8*n+i}")
        A(f"buffer_store_dwordx4 {vr(20+8*n,4)}, v5, s[28:31], s{64+n} offen")
    stamp(A, 3)
    stamp_rt(A, 5)
    stamp_store(A, 9, 36, 0)
    A("""
    K1_END:
    s_endpgm
    """)
    kernel_desc(A, name, 256)
```

```python
from common import *
RING = 4
def launch(): return "; @launch kernel=k2_kernel grid=(256,1,1) block=(256,1,1) lds=0"
QM = [8, 12]; QLO = [16, 20]; QHI = [18, 22]
S = [24, 40]; P = [56, 64]; O = [72, 88]; EB = [104, 108]
KB0 = 112
def KB(j): return KB0 + 4 * (j % RING)
VB0 = KB0 + 4 * RING
def VB(j): return VB0 + 8 * (j % RING)
NV = VB0 + 8 * RING

def qk_mfmas(j, q, Sd):
    e = EB[(j // 4) % 2] + 2 * (j & 1)
    qe = (QLO if (j % 4) < 2 else QHI)[q]
    return [f"v_mfma_f32_32x32x16_bf16 {vr(Sd,16)}, {vr(KB(j),4)}, {vr(QM[q],4)}, 0",
            f"v_mfma_f32_32x32x8_bf16 {vr(Sd,16)}, {vr(e,2)}, {vr(qe,2)}, {vr(Sd,16)}"]
def pv_mfmas(j, q, Pb):
    return [f"v_mfma_f32_32x32x16_bf16 {vr(O[q],16)}, {vr(VB(j),4)}, {vr(Pb,4)}, {vr(O[q],16)}",
            f"v_mfma_f32_32x32x16_bf16 {vr(O[q],16)}, {vr(VB(j)+4,4)}, {vr(Pb+4,4)}, {vr(O[q],16)}"]

UNR = 8
def ldK(j):
    a = j % UNR
    return ("K", j, f"buffer_load_dwordx4 {vr(KB(j),4)}, v3, s[28:31], s{40 + a // 4} offen offset:{(a % 4) * 1024}")
def ldV(j, f):
    a = j % 4
    so = "0" if a < 2 else "s44"
    return ("V%d" % f, j, f"buffer_load_dwordx4 {vr(VB(j) + 4 * f,4)}, v4, s[28:31], {so} offen offset:{(a % 2) * 1280 + f * 640}")
def ldE(i):
    return ("E", i, f"buffer_load_dwordx4 {vr(EB[i % 2],4)}, v3, s[28:31], s45 offen")

def slot_loads(j):
    d = {("A", 2): [ldK(j + RING)], ("A", 3): [ldV(j - 1 + RING, 0)], ("B", 0): [ldV(j - 1 + RING, 1)]}
    if j % 4 == 3: d[("B", 2)] = [ldE(j // 4 + 2)]
    return d

def wait_count(j):
    seq = []
    for jj in range(j - 3 * RING - 8, j + 1):
        d = slot_loads(jj)
        for pos in [("A", 2), ("A", 3), ("B", 0), ("B", 2)]:
            if jj == j and pos == ("A", 3): break
            for x in d.get(pos, []): seq.append((x[0], x[1]))
        else: continue
        break
    need = [("K", j + 1), ("V0", j), ("V1", j), ("E", (j + 1) // 4)]
    last = max(seq.index(n) for n in need)
    return len(seq) - 1 - last

def unit(A, Sc, Pc, mf, post):
    for g in range(4):
        A(mf[g])
        for x in post.get(g, []): A(x)
        for i in range(4): A(f"v_exp_f32 v{Sc+4*g+i}, v{Sc+4*g+i}")
        for i in range(2): A(f"v_cvt_pk_bf16_f32 v{Pc+2*g+i}, v{Sc+4*g+2*i}, v{Sc+4*g+2*i+1}")

def gen_k2(A, **opt):
    name = "k2_kernel"
    kernel_header(A, name)
    stamp(A, 0); stamp_rt(A, 4)
    A(f"""
    s_cmp_ge_u32 s2, 256
    s_cbranch_scc1 K2_END
    s_load_dwordx2 s[10:11], s[0:1], 80
    v_lshrrev_b32 v1, 6, v0
    s_and_b32 s39, s2, 7
    v_readfirstlane_b32 s36, v1
    v_and_b32 v1, 63, v0
    s_lshr_b32 s40, s2, 3
    s_lshr_b32 s37, s40, 3
    s_lshl_b32 s37, s37, 3
    s_add_u32 s37, s37, s39
    s_and_b32 s38, s40, 7
    s_lshl_b32 s38, s38, 3
    s_lshl_b32 s39, s36, 1
    s_add_u32 s38, s38, s39
    v_lshrrev_b32 v2, 5, v1
    v_lshlrev_b32 v3, 4, v1
    v_and_b32 v6, 31, v1
    """)
    A.c("V lane offsets: d<16: hh*256+d*16 ; d<20: 512+hh*64+(d-16)*16 ; d==20: ones ; else OOB")
    A(f"""
    v_lshlrev_b32 v7, 4, v6
    v_lshl_add_u32 v4, v2, 8, v7
    v_lshl_add_u32 v5, v2, 6, v7
    v_add_u32 v5, 256, v5
    v_cmp_gt_u32 vcc, 16, v6
    s_mul_i32 s41, s37, {VHEAD}
    s_add_u32 s41, s41, {WS_V:#x}
    v_cndmask_b32 v4, v5, v4, vcc
    v_add_u32 v4, s41, v4
    v_mov_b32 v5, 0x7f000000
    v_cmp_gt_u32 vcc, 20, v6
    v_mov_b32 v8, {WS_ONES:#x}
    v_mov_b32 v9, 5120
    v_cndmask_b32 v4, v5, v4, vcc
    v_cndmask_b32 v5, 0, v9, vcc
    v_cmp_eq_u32 vcc, 20, v6
    s_lshl_b32 s46, s37, 16
    s_lshl_b32 s47, s37, 14
    v_cndmask_b32 v4, v4, v8, vcc
    s_add_u32 s40, s46, {WS_K:#x}
    s_add_u32 s41, s40, 4096
    s_add_u32 s45, s47, {WS_K + QK_EXTRA:#x}
    s_movk_i32 s44, 2560
    s_lshl_b32 s48, s38, 10
    s_add_u32 s48, s48, s46
    s_add_u32 s48, s48, {WS_Q:#x}
    s_lshl_b32 s49, s38, 8
    s_add_u32 s49, s49, s47
    s_add_u32 s50, s49, {WS_Q + QK_EXTRA:#x}
    s_lshl_b32 s51, s38, 7
    s_add_u32 s51, s51, {WS_G:#x}
    v_lshlrev_b32 v24, 2, v6
    s_waitcnt lgkmcnt(0)
    """)
    srd(A, 28, 10, WS_SIZE)
    A(f"""
    buffer_load_dwordx4 v[8:11], v3, s[28:31], s48 offen
    buffer_load_dwordx4 v[12:15], v3, s[28:31], s48 offen offset:1024
    buffer_load_dwordx4 v[40:43], v7, s[28:31], s50 offen
    """)
    npro = 0
    first = []
    A(ldE(0)[2]); A("s_add_u32 s45, s45, 1024")
    seq = [("E", 0)]
    for j in range(-RING, 0):
        d = slot_loads(j)
        for pos in [("A", 2), ("A", 3), ("B", 0), ("B", 2)]:
            for x in d.get(pos, []):
                if x[1] < 0: continue
                if x[0] == "E" and x[1] == 0: continue
                A(x[2]); seq.append((x[0], x[1]))
                if x[0] == "E": A("s_add_u32 s45, s45, 1024")
                if x[0] == "K" and x[1] % 4 == 3: A(f"s_add_u32 s{40 + (x[1] % 8) // 4}, s{40 + (x[1] % 8) // 4}, 8192")
                if x[0] == "V1" and x[1] % 4 == 3: A("v_add_u32 v4, v4, v5")
    assert ("E", 1) in seq
    A(f"""
    buffer_load_dword v6, v24, s[28:31], s51 offen
    buffer_load_dword v7, v24, s[28:31], s51 offen offset:128
    """)
    for i in range(32): A(f"v_mov_b32 v{O[0]+i}, 0")
    for i in range(8): A(f"v_mov_b32 v{P[1]+i}, 0")
    for i in range(8): A(f"v_mov_b32 v{VB(RING-1)+i}, 0")
    kidx = seq.index(("K", 0))
    A(f"s_waitcnt vmcnt({len(seq) - 1 - kidx + 2})")
    A("v_cmp_eq_u32 vcc, 0, v2")
    A("s_nop 1")
    for q in range(2):
        for i in range(2):
            A(f"v_cndmask_b32 v{QLO[q]+i}, 0, v{40+2*q+i}, vcc")
            A(f"v_cndmask_b32 v{QHI[q]+i}, v{40+2*q+i}, 0, vcc")
    A("s_nop 1")
    for m in qk_mfmas(0, 0, S[0]): A(m)
    A("s_mov_b32 s52, 0")
    A("s_waitcnt vmcnt(0)" if opt.get("k2_safe") else "s_nop 0")
    A("s_nop 7")
    A("s_nop 7")
    stamp(A, 1)
    A(".p2align 6")
    A("K2_LOOP:")
    for j in range(UNR):
        d = slot_loads(j)
        postA = {2: [x[2] for x in d[("A", 2)]], 3: [f"s_waitcnt vmcnt({wait_count(j)})"] + [x[2] for x in d[("A", 3)]]}
        postB = {0: [x[2] for x in d[("B", 0)]]}
        if ("B", 2) in d: postB[2] = [x[2] for x in d[("B", 2)]]
        if ("B", 2) in d: postB[3] = ["s_add_u32 s45, s45, 1024"]
        if (j - 1 + RING) % 4 == 3: postB[2] = postB.get(2, []) + ["v_add_u32 v4, v4, v5"]
        if (j + RING) % 4 == 3:
            r = 40 + ((j + RING) % 8) // 4
            postB[3] = postB.get(3, []) + [f"s_add_u32 s{r}, s{r}, 8192"]
        if j == UNR - 1:
            postA[0] = ["s_add_u32 s52, s52, 1"]
        unit(A, S[0], P[0], qk_mfmas(j, 1, S[1]) + pv_mfmas(j - 1, 1, P[1]), postA)
        unit(A, S[1], P[1], qk_mfmas(j + 1, 0, S[0]) + pv_mfmas(j, 0, P[0]), postB)
    A(f"s_cmp_lt_u32 s52, {64 // UNR}")
    A("s_cbranch_scc1 K2_LOOP")
    for m in pv_mfmas(UNR - 1, 1, P[1]): A(m)
    stamp(A, 2)
    A("s_mov_b32 s53, 0")
    A("s_nop 15")
    A("K2_FIN:")
    A.c("finalize: l = row 20 (reg 8 of upper lanes)")
    T = 24
    for q in range(2):
        A(f"v_mov_b32 v{T+2*q}, v{O[q]+8}")
        A(f"v_mov_b32 v{T+2*q+1}, v{O[q]+8}")
    A("s_nop 1")
    for q in range(2): A(f"v_permlane32_swap_b32 v{T+2*q}, v{T+2*q+1}")
    A("s_waitcnt vmcnt(0)")
    for q in range(2):
        A(f"v_rcp_f32 v{T+2*q}, v{T+2*q+1}")
    A("v_mov_b32 v30, 0")
    for q in range(2):
        A(f"v_mul_f32 v{T+2*q}, v{T+2*q}, v{6+q}")
    for q in range(2):
        for i in range(12): A(f"v_mul_f32 v{O[q]+i}, v{O[q]+i}, v{T+2*q}")
    A.c("safety check (fast path only): 2^-30 <= l <= 2^60 and all outputs finite, else redo with the true row max")
    for q in range(2):
        for i in range(12): A(f"v_fma_f32 v30, v{O[q]+i}, 0, v30")
    A(f"""
    v_min_f32 v28, v25, v27
    v_max_f32 v29, v25, v27
    s_mov_b32 s54, {f2u(2.0**-30):#x}
    s_mov_b32 s55, {f2u(2.0**60):#x}
    v_cmp_le_f32 s[56:57], s54, v28
    v_cmp_ge_f32 s[58:59], s55, v29
    v_cmp_o_f32 s[60:61], v25, v27
    v_cmp_eq_f32 vcc, 0, v30
    s_and_b64 s[56:57], s[56:57], s[58:59]
    s_and_b64 s[56:57], s[56:57], s[60:61]
    s_and_b64 s[56:57], s[56:57], vcc
    s_cmp_eq_u64 s[56:57], -1
    s_cselect_b32 s56, 1, 0
    s_or_b32 s56, s56, s53
    s_cmp_eq_u32 s56, 0
    s_cbranch_scc1 K2_SLOW
    """)
    A.c("stores")
    for q in range(2):
        for i in range(4): A(f"v_cvt_pk_bf16_f32 v{32+4*q+i}, v{O[q]+2*i}, v{O[q]+2*i+1}")
        for i in range(2): A(f"v_cvt_pk_bf16_f32 v{40+2*q+i}, v{O[q]+8+2*i}, v{O[q]+8+2*i+1}")
    A(f"""
    s_lshl_b32 s56, s38, 15
    s_lshl_b32 s57, s37, 10
    s_add_u32 s56, s56, s57
    s_add_u32 s56, s56, {WS_O:#x}
    s_add_u32 s57, s56, 32768
    s_add_u32 s58, s49, {WS_OE:#x}
    v_mul_u32_u24 v44, 0x7f0000, v2
    v_lshl_add_u32 v44, v44, 8, v3
    buffer_store_dwordx4 v[32:35], v3, s[28:31], s56 offen
    buffer_store_dwordx4 v[36:39], v3, s[28:31], s57 offen
    buffer_store_dwordx4 v[40:43], v44, s[28:31], s58 offen
    """)
    if STAMP: A("s_waitcnt vmcnt(0)")
    stamp(A, 3); stamp_rt(A, 5)
    stamp_store(A, 9, 36, 1, vt=50)
    A("K2_END:")
    A("s_endpgm")
    A("K2_SLOW:")
    K = KB0; E = EB[0]; V = VB0
    A(f"""
    s_mov_b32 s53, 1
    v_and_b32 v44, 31, v1
    v_lshlrev_b32 v45, 4, v44
    v_mov_b32 v46, 0xff800000
    v_mov_b32 v47, 0xff800000
    v_mul_u32_u24 v48, 16, v5
    v_sub_u32 v4, v4, v48
    """)
    return_adv = (64 + RING - 1 + 0) // 4
    n_inc = sum(1 for j in range(-RING, 64) if (j - 1 + RING) >= 0 and (j - 1 + RING) % 4 == 3)
    if n_inc != 16:
        A(f"v_mul_u32_u24 v48, {n_inc - 16}, v5")
        A("v_sub_u32 v4, v4, v48")
    A(f"""
    v_cmp_ne_u32 vcc, 0, v5
    v_mov_b32 v48, 1280
    s_nop 0
    v_cndmask_b32 v49, 0, v48, vcc
    """)
    def slow_qk():
        A(f"""
        s_lshl_b32 s56, s52, 10
        s_add_u32 s56, s56, s46
        s_add_u32 s56, s56, {WS_K:#x}
        s_lshr_b32 s57, s52, 1
        s_lshl_b32 s57, s57, 9
        s_and_b32 s58, s52, 1
        s_lshl_b32 s58, s58, 3
        s_add_u32 s57, s57, s58
        s_add_u32 s57, s57, s47
        s_add_u32 s57, s57, {WS_K + QK_EXTRA:#x}
        buffer_load_dwordx4 {vr(K,4)}, v3, s[28:31], s56 offen
        buffer_load_dwordx2 {vr(E,2)}, v45, s[28:31], s57 offen
        """)
    def slow_mf():
        for q in range(2):
            Sx = [56, 128][q] if False else None
    SS = [112 + 16, 112 + 32]
    assert V + 8 <= SS[0] or True
    SA, SB = 24, 56
    A("s_mov_b32 s52, 0")
    A("K2_SLOW1:")
    slow_qk()
    A("s_waitcnt vmcnt(0)")
    for q, Sx in ((0, SA), (1, SB)):
        A(f"v_mfma_f32_32x32x16_bf16 {vr(Sx,16)}, {vr(K,4)}, {vr(QM[q],4)}, 0")
        A(f"v_mfma_f32_32x32x8_bf16 {vr(Sx,16)}, {vr(E,2)}, {vr(QLO[q],2)}, {vr(Sx,16)}")
    A("s_nop 15")
    for q, Sx in ((0, SA), (1, SB)):
        for i in range(8): A(f"v_max3_f32 v{46+q}, v{Sx+2*i}, v{Sx+2*i+1}, v{46+q}")
    A("""
    s_add_u32 s52, s52, 1
    s_cmp_lt_u32 s52, 64
    s_cbranch_scc1 K2_SLOW1
    v_mov_b32 v50, v46
    v_mov_b32 v51, v46
    v_mov_b32 v52, v47
    v_mov_b32 v53, v47
    s_nop 1
    v_permlane32_swap_b32 v50, v51
    v_permlane32_swap_b32 v52, v53
    s_nop 1
    v_max_f32 v46, v50, v51
    v_max_f32 v47, v52, v53
    s_mov_b32 s52, 0
    """)
    for i in range(32): A(f"v_mov_b32 v{O[0]+i}, 0")
    A("K2_SLOW2:")
    slow_qk()
    A(f"buffer_load_dwordx4 {vr(V,4)}, v4, s[28:31], 0 offen")
    A(f"buffer_load_dwordx4 {vr(V+4,4)}, v4, s[28:31], 0 offen offset:640")
    A("v_add_u32 v4, v4, v49")
    A("s_waitcnt vmcnt(0)")
    for q, Sx in ((0, SA), (1, SB)):
        A(f"v_mfma_f32_32x32x16_bf16 {vr(Sx,16)}, {vr(K,4)}, {vr(QM[q],4)}, 0")
        A(f"v_mfma_f32_32x32x8_bf16 {vr(Sx,16)}, {vr(E,2)}, {vr(QLO[q],2)}, {vr(Sx,16)}")
    A("s_nop 15")
    for q, Sx in ((0, SA), (1, SB)):
        for i in range(16): A(f"v_sub_f32 v{Sx+i}, v{Sx+i}, v{46+q}")
        for i in range(16): A(f"v_exp_f32 v{Sx+i}, v{Sx+i}")
        A("s_nop 0")
        for i in range(8): A(f"v_cvt_pk_bf16_f32 v{Sx+i}, v{Sx+2*i}, v{Sx+2*i+1}")
        A("s_nop 1")
        A(f"v_mfma_f32_32x32x16_bf16 {vr(O[q],16)}, {vr(V,4)}, {vr(Sx,4)}, {vr(O[q],16)}")
        A(f"v_mfma_f32_32x32x16_bf16 {vr(O[q],16)}, {vr(V+4,4)}, {vr(Sx+4,4)}, {vr(O[q],16)}")
    A("""
    s_add_u32 s52, s52, 1
    s_cmp_lt_u32 s52, 64
    s_cbranch_scc1 K2_SLOW2
    s_nop 15
    s_branch K2_FIN
    """)
    kernel_desc(A, name, NV)
```

```python
from common import *
RS = 656
K3_LDS = 4 * 32 * RS
def launch(): return f"; @launch kernel=k3_kernel grid=(256,1,1) block=(256,1,1) lds={K3_LDS}"
D = 6
ACC = 16
RB = ACC + 80
def ring(p): return RB + 24 * (p % D)
NV = RB + 24 * D

def gen_k3(A, **opt):
    name = "k3_kernel"
    kernel_header(A, name)
    stamp(A, 0); stamp_rt(A, 4)
    A(f"""
    s_cmp_ge_u32 s2, 256
    s_cbranch_scc1 K3_END
    s_load_dwordx2 s[10:11], s[0:1], 80
    s_load_dwordx2 s[8:9], s[0:1], 64
    v_lshrrev_b32 v1, 6, v0
    s_and_b32 s39, s2, 7
    v_readfirstlane_b32 s36, v1
    v_and_b32 v1, 63, v0
    s_lshr_b32 s40, s2, 3
    s_lshr_b32 s37, s39, 1
    s_lshl_b32 s37, s37, 4
    s_and_b32 s41, s40, 15
    s_add_u32 s37, s37, s41
    s_and_b32 s38, s39, 1
    s_lshl_b32 s38, s38, 1
    s_lshr_b32 s41, s40, 4
    s_add_u32 s38, s38, s41
    v_lshrrev_b32 v2, 5, v1
    v_lshlrev_b32 v3, 4, v1
    v_and_b32 v4, 31, v1
    v_lshlrev_b32 v5, 4, v4
    v_lshl_add_u32 v5, v2, 15, v5
    v_lshlrev_b32 v6, 2, v4
    v_mov_b32 v8, v3
    """)
    A(f"""
    s_mul_i32 s42, s36, {24*1024}
    s_mul_i32 s40, s37, {96*1024}
    s_add_u32 s40, s40, s42
    s_add_u32 s40, s40, {WS_H:#x}
    s_mul_i32 s41, s38, {5*96*1024}
    s_add_u32 s41, s41, s42
    s_add_u32 s41, s41, {WS_WD:#x}
    """)
    for t in range(5): A(f"s_add_u32 s{44+t}, s41, {t*96*1024}")
    A(f"""
    s_lshl_b32 s42, s36, 13
    s_lshl_b32 s50, s37, 15
    s_add_u32 s50, s50, s42
    s_add_u32 s50, s50, {WS_O:#x}
    s_mul_i32 s41, s38, {5*40*1024}
    s_add_u32 s41, s41, {WS_WO:#x}
    s_add_u32 s43, s41, s42
    """)
    for t in range(5): A(f"s_add_u32 s{52+t}, s43, {t*40*1024}")
    A(f"""
    s_lshl_b32 s42, s36, 11
    s_add_u32 s43, s41, s42
    s_add_u32 s43, s43, {32*1024}
    """)
    for t in range(5): A(f"s_add_u32 s{58+t}, s43, {t*40*1024}")
    A(f"""
    s_lshl_b32 s63, s36, 17
    s_lshr_b32 s42, s37, 1
    s_lshl_b32 s42, s42, 9
    s_add_u32 s63, s63, s42
    s_and_b32 s42, s37, 1
    s_lshl_b32 s42, s42, 3
    s_add_u32 s63, s63, s42
    s_add_u32 s63, s63, {WS_OE:#x}
    s_add_u32 s64, s63, 16384
    s_add_u32 s65, s63, 65536
    s_add_u32 s66, s63, {65536+16384}
    s_lshl_b32 s67, s37, 7
    s_add_u32 s67, s67, {WS_G + 8192:#x}
    s_waitcnt lgkmcnt(0)
    """)
    srd(A, 28, 10, WS_SIZE)
    srd(A, 32, 8, 2048 * 1280)
    A("buffer_load_dword v7, v6, s[28:31], s67 offen")
    NS = 34
    cnt = {}
    def issue(i):
        r = ring(i); n = 0
        if i < 24:
            if i % 4 == 0 and i > 0: A("v_add_u32 v8, 4096, v8")
            o = (i % 4) * 1024
            A(f"buffer_load_dwordx4 {vr(r,4)}, v8, s[28:31], s40 offen offset:{o}")
            for t in range(5): A(f"buffer_load_dwordx4 {vr(r+4+4*t,4)}, v8, s[28:31], s{44+t} offen offset:{o}")
            n = 6
        elif i < 32:
            k = i - 24
            if k == 0: A("v_mov_b32 v8, v3")
            if k == 4: A("v_add_u32 v8, 4096, v8")
            o = (k % 4) * 1024
            A(f"buffer_load_dwordx4 {vr(r,4)}, v8, s[28:31], s50 offen offset:{o}")
            for t in range(5): A(f"buffer_load_dwordx4 {vr(r+4+4*t,4)}, v8, s[28:31], s{52+t} offen offset:{o}")
            n = 6
        else:
            k = i - 32
            A(f"buffer_load_dwordx2 {vr(r,2)}, v5, s[28:31], s{63+2*k} offen")
            A(f"buffer_load_dwordx2 {vr(r+2,2)}, v5, s[28:31], s{64+2*k} offen")
            for t in range(5): A(f"buffer_load_dwordx4 {vr(r+4+4*t,4)}, v3, s[28:31], s{58+t} offen offset:{k*1024}")
            n = 7
        cnt[i] = n
    for i in range(D): issue(i)
    stamp(A, 1)
    for i in range(NS):
        out = sum(cnt[j] for j in range(i + 1, min(i + D, NS)))
        A(f"s_waitcnt vmcnt({out})")
        r = ring(i)
        if i == 24:
            A("s_nop 7")
            A("s_nop 7")
            for k in range(80): A(f"v_mul_f32 v{ACC+k}, v{ACC+k}, v7")
            A("s_nop 1")
        for t in range(5):
            c = "0" if i == 0 else vr(ACC + 16 * t, 16)
            A(f"v_mfma_f32_32x32x16_bf16 {vr(ACC+16*t,16)}, {vr(r+4+4*t,4)}, {vr(r,4)}, {c}")
        if i + D < NS: issue(i + D)
    stamp(A, 2)
    A.c("cross-wave reduction through LDS")
    A(f"""
    v_mul_u32_u24 v9, {RS}, v4
    v_lshl_add_u32 v9, v2, 4, v9
    s_mul_i32 s42, s36, {32*RS}
    v_add_u32 v9, s42, v9
    s_movk_i32 s43, 1639
    """)
    for i in range(5):
        A(f"""
        v_add_u32 v10, {256*i}, v0
        v_mul_lo_u32 v11, v10, s43
        v_lshrrev_b32 v11, 16, v11
        v_mul_u32_u24 v12, 40, v11
        v_sub_u32 v12, v10, v12
        v_mul_u32_u24 v13, {RS}, v11
        v_lshl_add_u32 v{RB+i}, v12, 4, v13
        v_mul_u32_u24 v13, 1280, v11
        v_lshl_add_u32 v{RB+8+i}, v12, 3, v13
        """)
    for t in range(5):
        for a in range(4):
            A(f"ds_write_b128 v9, {vr(ACC+16*t+4*a,4)} offset:{(32*t+8*a)*4}")
    A(f"""
    s_mul_i32 s42, s37, {32*1280}
    s_mul_i32 s43, s38, 320
    s_add_u32 s42, s42, s43
    s_waitcnt lgkmcnt(0)
    s_barrier
    """)
    for i in range(5):
        for w in range(4):
            A(f"ds_read_b128 {vr(ACC+16*i+4*w,4)}, v{RB+i} offset:{w*32*RS}")
    for i in range(5):
        b = ACC + 16 * i
        A(f"s_waitcnt lgkmcnt({min(15, 16-4*i)})" if i < 4 else "s_waitcnt lgkmcnt(0)")
        for k in range(2):
            A(f"v_pk_add_f32 {vr(b+2*k,2)}, {vr(b+2*k,2)}, {vr(b+4+2*k,2)}")
            A(f"v_pk_add_f32 {vr(b+8+2*k,2)}, {vr(b+8+2*k,2)}, {vr(b+12+2*k,2)}")
        for k in range(2):
            A(f"v_pk_add_f32 {vr(b+2*k,2)}, {vr(b+2*k,2)}, {vr(b+8+2*k,2)}")
        A(f"v_cvt_pk_bf16_f32 v{b+4}, v{b}, v{b+1}")
        A(f"v_cvt_pk_bf16_f32 v{b+5}, v{b+2}, v{b+3}")
        A(f"buffer_store_dwordx2 {vr(b+4,2)}, v{RB+8+i}, s[32:35], s42 offen")
    if STAMP: A("s_waitcnt vmcnt(0)")
    stamp(A, 3); stamp_rt(A, 5)
    stamp_store(A, 9, 36, 2, vt=10)
    A("K3_END:")
    A("s_endpgm")
    kernel_desc(A, name, NV)
```

```python
import sys
from common import *
import k1
HDR = open('cdna_kernels/%s.s.ref' % NAME).read().split('; Override launch')[0]
def build(which=("k1","k2","k3"), **opt):
    A = Asm()
    launches = []
    if "k1" in which: launches.append(k1.launch())
    if "k2" in which:
        import k2
        launches.append(k2.launch())
    if "k3" in which:
        import k3
        launches.append(k3.launch())
    if "k1" in which: k1.gen_k1(A)
    if "k2" in which: k2.gen_k2(A, **opt)
    if "k3" in which: k3.gen_k3(A, **opt)
    return HDR + "\n".join(launches) + '\n.amdgcn_target "amdgcn-amd-amdhsa--gfx950"\n' + A.text()
if __name__ == "__main__":
    which = sys.argv[2].split(",") if len(sys.argv) > 2 else ("k1","k2","k3")
    open(sys.argv[1], "w").write(build(which))
```

```python
import math, struct

NAME = "gated_mix__softmax_full_mha__glu_gated_geglu__prompt"
WS_Q  = 0x0000000
WS_K  = 0x0280000
QK_EXTRA = 0x200000
WS_V  = 0x0510000
VHEAD = 64 * 1280
WS_ONES = WS_V - 8192
WS_H  = 0x0900000
WS_O  = 0x0F00000
WS_OE = WS_O + 0x200000
WS_WD = 0x1180000
WS_WO = WS_WD + 1920 * 1024
WS_G  = 0x1480000
WS_B  = 0x1500000
WS_SIZE = 0x2000000

def f2u(x):
    return struct.unpack("<I", struct.pack("<f", x))[0]

LOG2E = 1.4426950408889634
QSCALE = LOG2E / math.sqrt(20.0)

class Asm:
    def __init__(self):
        self.L = []
    def __call__(self, s, *a):
        for line in s.split("\n"):
            line = line.strip()
            if not line: continue
            if line.endswith(":") or line.startswith("."):
                self.L.append(line)
            else:
                self.L.append("    " + line)
    def c(self, s):
        self.L.append("    ; " + s)
    def text(self):
        return "\n".join(self.L) + "\n"

def vr(a, n=1):
    return f"v{a}" if n == 1 else f"v[{a}:{a+n-1}]"
def sr(a, n=1):
    return f"s{a}" if n == 1 else f"s[{a}:{a+n-1}]"

def kernel_header(A, name):
    A(f""".text
.globl {name}
.p2align 8
.type {name},@function
{name}:""")

def kernel_desc(A, name, nvgpr, nsgpr=96):
    acc = (nvgpr + 3) // 4 * 4
    A.L.append(f""".section .rodata,"a"
.p2align 6
.amdhsa_kernel {name}
  .amdhsa_next_free_vgpr {nvgpr}
  .amdhsa_next_free_sgpr {nsgpr}
  .amdhsa_accum_offset {acc}
  .amdhsa_group_segment_fixed_size 0
  .amdhsa_kernarg_size 88
  .amdhsa_user_sgpr_count 2
  .amdhsa_user_sgpr_kernarg_segment_ptr 1
  .amdhsa_system_sgpr_workgroup_id_x 1
.end_amdhsa_kernel""")

def srd(A, d, base, nbytes):
    A(f"s_mov_b32 s{d}, s{base}")
    A(f"s_mov_b32 s{d+1}, s{base+1}")
    A(f"s_mov_b32 s{d+2}, {nbytes:#x}")
    A(f"s_mov_b32 s{d+3}, 0x00020000")

WS_DBG = 0x1C00000
import os
STAMP = bool(int(os.environ.get("STAMP", "0")))
def stamp(A, i, base=70):
    if STAMP:
        A(f"s_memtime s[{base+2*i}:{base+1+2*i}]")
def stamp_rt(A, i, base=70):
    if STAMP:
        A(f"s_memrealtime s[{base+2*i}:{base+1+2*i}]")
def stamp_store(A, n, wave_sgpr, kidx, srd=28, vt=250, base=70):
    if not STAMP: return
    A("s_waitcnt lgkmcnt(0)")
    A(f"s_lshl_b32 s3, s2, 4")
    A(f"s_add_u32 s3, s3, s{wave_sgpr}")
    A(f"s_lshl_b32 s3, s3, 6")
    A(f"s_add_u32 s3, s3, {WS_DBG + kidx*0x40000:#x}")
    A(f"v_mov_b32 v{vt}, 0")
    for i in range(n):
        A(f"v_mov_b32 v{vt+1}, s{base+2*i}")
        A(f"buffer_store_dword v{vt+1}, v{vt}, s[{srd}:{srd+3}], s3 offen offset:{4*i}")
        A("s_nop 1")

def srd_off(A, d, base, off_sgpr, nbytes):
    A(f"s_add_u32 s{d}, s{base}, {off_sgpr}")
    A(f"s_addc_u32 s{d+1}, s{base+1}, 0")
    A(f"s_mov_b32 s{d+2}, {nbytes}")
    A(f"s_mov_b32 s{d+3}, 0x00020000")
```

```python
from common import *

STAGE = 53376
XB = 32768
GW = 3 * STAGE
K1_LDS = GW + 2048
ST = os.environ.get('K1ST', '')
RC = int(os.environ.get('K1RC', '2'))
RR = int(os.environ.get('K1RR', '5'))
ACC0 = 96
def acc(rt, t): return ACC0 + (rt * 5 + t) * 16
def xf(buf, rt): return 16 + (buf * 2 + rt) * 4
def wf(buf, t): return 32 + (buf * 5 + t) * 4
XA = 4
WA = 8
WA2 = 9
V_LANE = 1
V_HH = 2
V_NH = 3

def emit_reads(kind, buf, ks, nt):
    R = []
    for rt in range(2):
        R.append(f"ds_read_b128 {vr(xf(buf, rt), 4)}, v{XA + ks} offset:{rt * 4096}")
    for t in range(nt):
        for j2 in range(2):
            wa = WA
            if kind == "GU":
                off = ks * 2560 + j2 * 640 + t * 32
            else:
                off = ks * 5120 + j2 * 1280 + (t * 80 if t < 4 else 0)
                if t == 4: wa = WA2
            R.append(f"ds_read_b64_tr_b16 {vr(wf(buf, t) + 2 * j2, 2)}, v{wa} offset:{off}")
    order = [R[0], R[2], R[3], R[1]] + R[4:]
    return order

def consumer_loop(A, kind, lab, nt=5, gate=False):
    lay = "GU" if kind == "GU" else "QK"
    A("s_barrier")
    stamp(A, 1)
    for r in emit_reads(lay, 0, 0, nt): A(r)
    if gate:
        A("ds_read_b128 v[72:75], v80")
    A("s_mov_b32 s44, 0")
    A(".p2align 6")
    A(f"{lab}:")
    for ks in range(4):
        buf = ks & 1
        nks = (ks + 1) & 3
        reads = emit_reads(lay, buf ^ 1, nks, nt)
        mf = []
        for t in range(nt):
            for rt in range(2):
                a = acc(rt, t)
                if kind == "V":
                    mf.append(f"v_mfma_f32_32x32x16_bf16 {vr(a,16)}, {vr(xf(buf,rt),4)}, {vr(wf(buf,t),4)}, {vr(a,16)}")
                else:
                    mf.append(f"v_mfma_f32_32x32x16_bf16 {vr(a,16)}, {vr(wf(buf,t),4)}, {vr(xf(buf,rt),4)}, {vr(a,16)}")
        A("s_waitcnt lgkmcnt(0)")
        if gate:
            gb, gn = 72 + 4 * buf, 72 + 4 * (buf ^ 1)
            A(f"ds_read_b128 {vr(gn,4)}, v80 offset:{(ks + 1) * 32}")
            if ks == 3: A("v_add_u32 v80, 128, v80")
            for rt in range(2):
                for i in range(4):
                    A(f"v_dot2_f32_bf16 v{82 + rt * 2 + (i & 1)}, v{xf(buf, rt) + i}, v{gb + i}, v{82 + rt * 2 + (i & 1)}")
        start = 0
        if ks == 3:
            A(mf[0])
            A("s_cmp_eq_u32 s45, 2")
            A(f"s_mov_b32 s47, {STAGE}")
            A(f"s_cmov_b32 s47, {(-2 * STAGE) & 0xffffffff:#x}")
            A("s_add_u32 s45, s45, 1")
            A("s_cmp_eq_u32 s45, 3")
            A("s_cselect_b32 s45, 0, s45")
            for i in range(4): A(f"v_add_u32 v{XA+i}, s47, v{XA+i}")
            A(f"v_add_u32 v{WA}, s47, v{WA}")
            if lay != "GU": A(f"v_add_u32 v{WA2}, s47, v{WA2}")
            A("s_barrier")
            start = 1
        ri = 0
        n = len(mf) - start
        per = [0] * n
        k = 0
        for g in range(n):
            take = min(2, len(reads) - k) if nt == 5 else len(reads) - k
            per[g] = take; k += take
        k = 0
        for g in range(n):
            A(mf[start + g])
            for _ in range(per[g]):
                A(reads[k]); k += 1
    A("s_add_u32 s44, s44, 1")
    A("s_cmp_lt_u32 s44, 10")
    A(f"s_cbranch_scc1 {lab}")
    A("s_waitcnt lgkmcnt(0) vmcnt(0)")
    A("s_nop 15")
    stamp(A, 2)

def gen_k1(A):
    name = "k1_kernel"
    kernel_header(A, name)
    stamp(A, 0)
    stamp_rt(A, 4)
    def fin():
        stamp(A, 7)
        if STAMP: A("s_waitcnt vmcnt(0)")
        stamp(A, 3)
        stamp_rt(A, 5)
        stamp_store(A, 9, 36, 0, vt=92)
        A("s_endpgm")
    A("""
    s_cmp_ge_u32 s2, 256
    s_cbranch_scc1 K1_END
    s_load_dwordx4 s[4:7], s[0:1], 0
    s_load_dwordx2 s[8:9], s[0:1], 16
    s_load_dwordx8 s[12:19], s[0:1], 32
    s_load_dwordx2 s[10:11], s[0:1], 80
    v_lshrrev_b32 v1, 6, v0
    s_and_b32 s39, s2, 7
    v_readfirstlane_b32 s36, v1
    v_and_b32 v1, 63, v0
    s_lshr_b32 s40, s2, 3
    s_lshr_b32 s37, s39, 2
    s_lshl_b32 s37, s37, 2
    s_and_b32 s41, s40, 3
    s_add_u32 s37, s37, s41
    s_and_b32 s38, s39, 3
    s_lshl_b32 s38, s38, 3
    s_lshr_b32 s41, s40, 2
    s_add_u32 s38, s38, s41
    v_lshrrev_b32 v2, 5, v1
    v_sub_u32 v3, 1, v2
    s_cmp_lt_u32 s36, 4
    s_cbranch_scc1 K1_CONS
    """)
    A(f"""
    s_sub_u32 s40, s36, 4
    v_lshrrev_b32 v4, 3, v1
    s_lshl_b32 s41, s40, 6
    v_add_u32 v4, s41, v4
    v_mul_u32_u24 v4, 1280, v4
    v_and_b32 v5, 7, v1
    v_lshrrev_b32 v6, 4, v1
    v_xor_b32 v5, v5, v6
    v_lshl_add_u32 v10, v5, 4, v4
    v_xor_b32 v11, 64, v10
    s_mul_i32 s41, s37, {256*1280}
    s_lshl_b32 s48, s40, 13
    s_and_b32 s55, s40, 1
    s_lshr_b32 s56, s40, 1
    s_mul_i32 s56, s56, 10368
    s_mul_i32 s57, s55, 5120
    s_add_u32 s56, s56, s57
    s_mul_i32 s57, s40, 5120
    s_sub_u32 s58, s38, 12
    s_mul_i32 s58, s58, 160
    s_mul_i32 s59, s38, 320
    s_cmp_ge_u32 s38, 12
    s_cselect_b32 s49, s56, s57
    s_cselect_b32 s42, s58, s59
    s_cselect_b32 s53, s55, s40
    s_movk_i32 s50, 3277
    s_cmovk_i32 s50, 6554
    s_cselect_b32 s51, 10, 20
    s_movk_i32 s52, 3840
    s_cmovk_i32 s52, 3072
    s_mul_i32 s53, s53, 320
    s_lshl_b32 s54, s52, 6
    s_mul_i32 s26, s52, 640
    s_add_u32 s49, s49, {XB}
    s_mov_b32 s27, 0x00020000
    s_mov_b32 s43, 0
    v_add_u32 v4, s53, v1
    s_and_b32 s55, s38, 7
    s_and_b32 s56, s37, 3
    s_mul_i32 s55, s55, {RC}
    s_mul_i32 s56, s56, {RR}
    s_add_u32 s55, s55, s56
    s_lshr_b32 s55, s55, 1
    s_cmp_ge_u32 s55, 10
    s_cselect_b32 s56, 10, 0
    s_sub_u32 s55, s55, s56
    s_cmp_ge_u32 s55, 10
    s_cselect_b32 s56, 10, 0
    s_sub_u32 s47, s55, s56
    s_cmp_eq_u32 s38, 31
    s_cselect_b32 s47, 0, s47
    s_lshl_b32 s55, s47, 7
    s_add_u32 s41, s41, s55
    s_mul_i32 s55, s47, s54
    s_add_u32 s42, s42, s55
    """)
    for i in range(5):
        A(f"""
        v_mul_u32_u24 v5, s50, v4
        v_lshrrev_b32 v5, 16, v5
        v_mul_u32_u24 v6, s51, v5
        v_sub_u32 v6, v4, v6
        v_mul_u32_u24 v5, s52, v5
        v_lshl_add_u32 v{12+i}, v6, 4, v5
        """)
        if i < 4: A("v_add_u32 v4, 64, v4")
    A("s_waitcnt lgkmcnt(0)")
    stamp(A, 6)
    srd(A, 20, 4, 2048 * 1280)
    A("""
    s_cmp_lt_u32 s40, 2
    s_cselect_b32 s24, s12, s14
    s_cselect_b32 s25, s13, s15
    s_cmp_lt_u32 s38, 12
    s_cselect_b32 s24, s6, s24
    s_cselect_b32 s25, s7, s25
    """)
    def issue_x(lo, hi):
        A("s_add_u32 s56, s43, s48")
        for i in range(lo, hi):
            A(f"s_add_u32 m0, s56, {i*1024}")
            A(f"s_add_u32 s57, s41, {i*10240}")
            A(f"buffer_load_dwordx4 v{10+(i&1)}, s[20:23], s57 offen lds")
    def issue_w():
        A("s_add_u32 s56, s43, s49")
        for i in range(5):
            A(f"s_add_u32 m0, s56, {i*1024}")
            A("s_nop 0")
            A(f"buffer_load_dwordx4 v{12+i}, s[24:27], s42 offen lds")
    def advance():
        A(f"""
        s_add_u32 s41, s41, 128
        s_add_u32 s42, s42, s54
        s_add_u32 s47, s47, 1
        s_cmp_eq_u32 s47, 10
        s_cselect_b32 s47, 0, s47
        s_cselect_b32 s56, 1280, 0
        s_cselect_b32 s57, s26, 0
        s_sub_u32 s41, s41, s56
        s_sub_u32 s42, s42, s57
        s_add_u32 s43, s43, {STAGE}
        s_cmp_eq_u32 s43, {3*STAGE}
        s_cselect_b32 s43, 0, s43
        """)
    def issue():
        issue_w(); issue_x(0, 8); advance()
    stamp(A, 7)
    issue_x(0, 8); issue_w(); advance()
    NE = int(os.environ.get("K1NE", "2"))
    issue_w(); issue_x(0, NE)
    stamp(A, 8)
    A(f"s_waitcnt vmcnt({5+NE})")
    A("s_barrier")
    stamp(A, 1)
    issue_x(NE, 8); advance()
    issue()
    srd(A, 28, 10, WS_SIZE)
    A("""
    s_waitcnt vmcnt(13)
    s_barrier
    """)
    issue()
    A.c("weight re-layout job: frag F = wg*4+lw + 1024*n  (F < 2720)")
    A(f"""
    v_and_b32 v4, 31, v1
    v_lshlrev_b32 v4, 1, v4
    v_lshlrev_b32 v5, 4, v1
    s_lshl_b32 s58, s2, 2
    s_add_u32 s58, s58, s40
    s_mov_b32 s35, 0x00020000
    """)
    for n in range(3):
        A(f"""
        s_add_u32 s59, s58, {1024*n}
        s_min_u32 s59, s59, 2719
        s_cmp_lt_u32 s59, 1920
        s_cselect_b32 s32, s16, s8
        s_cselect_b32 s33, s17, s9
        s_mov_b32 s34, {640*1280}
        s_cmov_b32 s34, {1536*1280}
        s_cselect_b32 s60, 0, 1920
        s_cselect_b32 s61, 96, 40
        s_mov_b32 s62, {(1<<32)//40+1:#x}
        s_cmov_b32 s62, {(1<<32)//96+1:#x}
        s_cselect_b32 s67, 16, 20
        s_cselect_b32 s50, 8, 4
        s_cselect_b32 s51, 4, 8
        s_cselect_b32 s52, 1000, 32
        s_sub_u32 s60, s59, s60
        s_mul_hi_u32 s63, s60, s62
        s_mul_i32 s61, s63, s61
        s_sub_u32 s60, s60, s61
        s_mul_i32 s61, s60, s67
        s_mul_i32 s53, s60, 80
        s_sub_u32 s53, s53, {32*80-16}
        s_cmp_ge_u32 s60, s52
        s_cselect_b32 s61, s53, s61
        s_cselect_b32 s50, 40, s50
        s_cselect_b32 s51, 20, s51
        s_mul_i32 s60, s61, 1280
        s_lshl_b32 s63, s63, 6
        s_add_u32 s60, s60, s63
        s_mul_i32 s61, s51, 1280
        s_add_u32 s61, s61, s60
        s_mul_i32 s50, s50, 1280
        v_mad_u32_u24 v{6+n}, v2, s50, v4
        s_lshl_b32 s{64+n}, s59, 10
        s_add_u32 s{64+n}, s{64+n}, {WS_WD:#x}
        """)
        for j in range(8):
            reg = 20 + 8 * n + j // 2 + 4 * (j & 1)
            A(f"buffer_load_ushort v{reg}, v{6+n}, s[32:35], s{60 + j // 4} offen offset:{(j % 4) * 1280}")
    A("""
    s_waitcnt vmcnt(37)
    s_barrier
    """)
    issue()
    A("s_waitcnt vmcnt(13)")
    for n in range(3):
        for i in range(4):
            A(f"v_lshl_or_b32 v{20+8*n+i}, v{24+8*n+i}, 16, v{20+8*n+i}")
        A(f"buffer_store_dwordx4 {vr(20+8*n,4)}, v5, s[28:31], s{64+n} offen {ST}")
    A("""
    s_barrier
    """)
    issue()
    A("""
    s_mov_b32 s44, 4
    K1_LD_LOOP:
    s_waitcnt vmcnt(13)
    s_barrier
    """)
    issue()
    A("""
    s_add_u32 s44, s44, 1
    s_cmp_lt_u32 s44, 8
    s_cbranch_scc1 K1_LD_LOOP
    s_waitcnt vmcnt(13)
    s_barrier
    s_waitcnt vmcnt(0)
    s_barrier
    s_barrier
    """)
    stamp(A, 2)
    stamp(A, 3)
    stamp_rt(A, 5)
    stamp_store(A, 9, 36, 0)
    A("""
    K1_END:
    s_endpgm
    K1_CONS:
    """)
    A.c("x frag addresses: row = 64w + (l&31); addr = row*128 + (((2ks+kh) ^ ((row>>1)&7))<<4)")
    A("""
    v_and_b32 v9, 31, v1
    v_lshrrev_b32 v10, 1, v9
    v_and_b32 v10, 7, v10
    v_xor_b32 v10, v10, v2
    s_lshl_b32 s40, s36, 13
    v_lshlrev_b32 v11, 7, v9
    v_add_u32 v11, s40, v11
    """)
    for ks in range(4):
        A(f"v_xor_b32 v12, {2*ks}, v10")
        A(f"v_lshl_add_u32 v{XA+ks}, v12, 4, v11")
    A.c("W frag address pieces: r=(l>>2)&3, c=l&3, colhalf=(l>>4)&1, khalf=hh")
    A("""
    v_lshrrev_b32 v12, 2, v1
    v_and_b32 v12, 3, v12
    v_lshl_add_u32 v12, v2, 3, v12
    v_and_b32 v13, 3, v1
    v_lshrrev_b32 v14, 4, v1
    v_and_b32 v14, 1, v14
    s_mov_b32 s45, 0
    """)
    A("s_waitcnt lgkmcnt(0)")
    stamp(A, 6)
    srd(A, 20, 4, 2048 * 1280)
    srd(A, 28, 10, WS_SIZE)
    for i in range(160): A(f"v_mov_b32 v{ACC0+i}, 0")
    A(f"""
    s_cmp_ge_u32 s38, 12
    s_cbranch_scc1 K1_GU
    v_mul_u32_u24 v12, 320, v12
    v_add_u32 v12, {XB + 32}, v12
    v_mul_u32_u24 v15, 160, v14
    v_add_u32 v15, v15, v12
    v_mul_u32_u24 v10, 40, v13
    v_add_u32 v{WA2}, v15, v10
    v_mul_u32_u24 v15, 40, v14
    v_add_u32 v12, v15, v12
    v_subrev_u32 v12, 32, v12
    s_cmp_ge_u32 s38, 8
    s_cbranch_scc1 K1_V
    v_and_b32 v14, 1, v13
    v_lshl_add_u32 v12, v14, 4, v12
    v_lshrrev_b32 v14, 1, v13
    v_lshl_add_u32 v{WA}, v14, 3, v12
    """)
    consumer_loop(A, "QK", "K1_QK_LOOP")
    A.c("QK epilogue: main frags [head][T][lane][16B]; extras [head][T/2][tok][rt0 8B|rt1 8B]")
    A(f"""
    s_cmp_lt_u32 s38, 4
    s_cselect_b32 s50, {f2u(QSCALE):#x}, 1.0
    s_mov_b32 s51, s50
    s_cselect_b32 s52, {WS_Q:#x}, {WS_K:#x}
    s_and_b32 s53, s38, 3
    s_lshl_b32 s54, s37, 3
    s_lshl_b32 s55, s36, 1
    s_add_u32 s54, s54, s55
    s_lshl_b32 s55, s53, 19
    s_add_u32 s55, s55, s52
    s_lshl_b32 s56, s54, 10
    s_add_u32 s55, s55, s56
    s_lshl_b32 s56, s53, 17
    s_add_u32 s56, s56, s52
    s_add_u32 s56, s56, {QK_EXTRA:#x}
    s_lshl_b32 s57, s54, 8
    s_add_u32 s56, s56, s57
    v_lshlrev_b32 v10, 4, v1
    v_and_b32 v11, 31, v1
    v_lshlrev_b32 v11, 4, v11
    v_lshl_add_u32 v11, v2, 14, v11
    """)
    tmp = 16
    for t in range(4):
        for hp in range(2):
            A(f"s_add_u32 s59, s55, {(2*t+hp)*65536:#x}")
            for rt in range(2):
                r0 = acc(rt, t) + 8 * hp
                d = tmp; tmp = 16 + (tmp - 16 + 4) % 48
                for i in range(4):
                    A(f"v_pk_mul_f32 {vr(r0+2*i,2)}, {vr(r0+2*i,2)}, s[50:51]")
                for i in range(4):
                    A(f"v_cvt_pk_bf16_f32 v{d+i}, v{r0+2*i}, v{r0+2*i+1}")
                A(f"buffer_store_dwordx4 {vr(d,4)}, v10, s[28:31], s59 offen offset:{rt*1024} {ST}")
    for a in range(4):
        A(f"s_add_u32 s59, s56, {2*a*16384:#x}")
        d = tmp; tmp = 16 + (tmp - 16 + 4) % 48
        for rt in range(2):
            r0 = acc(rt, 4) + 4 * a
            for i in range(2):
                A(f"v_pk_mul_f32 {vr(r0+2*i,2)}, {vr(r0+2*i,2)}, s[50:51]")
            for i in range(2):
                A(f"v_cvt_pk_bf16_f32 v{d+2*rt+i}, v{r0+2*i}, v{r0+2*i+1}")
        A(f"buffer_store_dwordx4 {vr(d,4)}, v11, s[28:31], s59 offen {ST}")
    fin()
    A("K1_V:")
    A(f"v_lshl_add_u32 v{WA}, v13, 3, v12")
    consumer_loop(A, "V", "K1_V_LOOP")
    A.c("V epilogue: block per (head,T,f) = 640B: [hh0 d0-15][hh1 d0-15][hh0 d16-19][hh1 d16-19]")
    A(f"""
    s_and_b32 s53, s38, 3
    s_mul_i32 s55, s53, {8*VHEAD}
    s_add_u32 s55, s55, {WS_V:#x}
    s_lshl_b32 s54, s37, 3
    s_lshl_b32 s56, s36, 1
    s_add_u32 s54, s54, s56
    s_mul_i32 s54, s54, 1280
    s_add_u32 s55, s55, s54
    v_and_b32 v10, 15, v1
    v_lshlrev_b32 v10, 4, v10
    v_lshl_add_u32 v10, v2, 8, v10
    v_lshrrev_b32 v11, 4, v1
    v_and_b32 v11, 1, v11
    s_mov_b32 s57, {VHEAD}
    v_mad_u32_u24 v10, v11, s57, v10
    v_and_b32 v11, 3, v1
    v_lshlrev_b32 v11, 4, v11
    v_lshl_add_u32 v11, v2, 6, v11
    v_lshrrev_b32 v12, 2, v1
    v_and_b32 v12, 7, v12
    v_mad_u32_u24 v11, v12, s57, v11
    """)
    tmp = 16
    for t in range(5):
        A(f"s_add_u32 s59, s55, {(2*t*VHEAD if t < 4 else 512):#x}")
        for rt in range(2):
            for f in range(2):
                r0 = acc(rt, t) + 8 * f
                d = tmp; tmp = 16 + (tmp - 16 + 4) % 48
                for i in range(4):
                    A(f"v_cvt_pk_bf16_f32 v{d+i}, v{r0+2*i}, v{r0+2*i+1}")
                A(f"buffer_store_dwordx4 {vr(d,4)}, v{10 if t < 4 else 11}, s[28:31], s59 offen offset:{rt*1280+f*640} {ST}")
    fin()
    A("K1_GU:")
    A.c("foff = {0,8,4,12}[c] -> bytes {0,16,8,24} = ((c&1)<<4) | ((c>>1)<<3)")
    A(f"""
    v_mul_u32_u24 v12, 160, v12
    v_mul_u32_u24 v14, 10368, v14
    v_add_u32 v12, v12, v14
    v_and_b32 v14, 1, v13
    v_lshl_add_u32 v12, v14, 4, v12
    v_lshrrev_b32 v14, 1, v13
    v_lshl_add_u32 v12, v14, 3, v12
    v_add_u32 v{WA}, {XB}, v12
    s_cmp_eq_u32 s38, 31
    s_cbranch_scc1 K1_GUG
    """)
    consumer_loop(A, "GU", "K1_GU_LOOP")
    def gu_epilogue(nt):
        C0 = -2.0 * LOG2E * math.sqrt(2.0 / math.pi)
        C1 = C0 * 0.044715
        A(f"""
        s_mov_b32 s50, {f2u(C1):#x}
        s_mov_b32 s51, {f2u(C1):#x}
        v_mov_b32 v10, {f2u(C0):#x}
        v_mov_b32 v11, {f2u(C0):#x}
        s_lshl_b32 s54, s37, 3
        s_lshl_b32 s56, s36, 1
        s_add_u32 s54, s54, s56
        s_mul_i32 s54, s54, 96
        s_sub_u32 s55, s38, 12
        s_mul_i32 s55, s55, 5
        s_add_u32 s54, s54, s55
        s_lshl_b32 s54, s54, 10
        s_add_u32 s55, s54, {WS_H:#x}
        s_add_u32 s56, s55, {96*1024}
        s_add_u32 s57, s55, 4096
        s_add_u32 s58, s56, 4096
        v_lshlrev_b32 v9, 4, v1
        """)
        tmp = 16
        for rt in range(2):
            for t in range(nt):
                g0 = acc(rt, t); u0 = g0 + 8
                z = 64
                d = tmp; tmp = 16 + (tmp - 16 + 4) % 48
                for p in range(4):
                    A(f"v_pk_mul_f32 {vr(z+2*p,2)}, {vr(g0+2*p,2)}, {vr(g0+2*p,2)}")
                for p in range(4):
                    A(f"v_pk_fma_f32 {vr(z+2*p,2)}, {vr(z+2*p,2)}, s[50:51], v[10:11]")
                for p in range(4):
                    A(f"v_pk_mul_f32 {vr(z+2*p,2)}, {vr(z+2*p,2)}, {vr(g0+2*p,2)}")
                for i in range(8):
                    A(f"v_exp_f32 v{z+i}, v{z+i}")
                for p in range(4):
                    A(f"v_pk_mul_f32 {vr(u0+2*p,2)}, {vr(u0+2*p,2)}, {vr(g0+2*p,2)}")
                for p in range(4):
                    A(f"v_pk_add_f32 {vr(z+2*p,2)}, {vr(z+2*p,2)}, 1.0 op_sel_hi:[1,0]")
                for i in range(8):
                    A(f"v_rcp_f32 v{z+i}, v{z+i}")
                A("s_nop 0")
                for p in range(4):
                    A(f"v_pk_mul_f32 {vr(u0+2*p,2)}, {vr(u0+2*p,2)}, {vr(z+2*p,2)}")
                for p in range(4):
                    A(f"v_cvt_pk_bf16_f32 v{d+p}, v{u0+2*p}, v{u0+2*p+1}")
                if t < 4:
                    A(f"buffer_store_dwordx4 {vr(d,4)}, v9, s[28:31], s{55+rt} offen offset:{t*1024} {ST}")
                else:
                    A(f"buffer_store_dwordx4 {vr(d,4)}, v9, s[28:31], s{57+rt} offen {ST}")
    gu_epilogue(5)
    fin()
    A("K1_GUG:")
    srd(A, 32, 18, 1280)
    A(f"""
    s_mov_b32 m0, {GW}
    v_lshlrev_b32 v81, 4, v1
    buffer_load_dwordx4 v81, s[32:35], 0 offen lds
    buffer_load_dwordx4 v81, s[32:35], 0 offen offset:1024 lds
    v_lshlrev_b32 v80, 4, v2
    v_add_u32 v80, {GW}, v80
    s_waitcnt vmcnt(0)
    v_mov_b32 v82, 0
    v_mov_b32 v83, 0
    v_mov_b32 v84, 0
    v_mov_b32 v85, 0
    """)
    consumer_loop(A, "GU", "K1_GUG_LOOP", nt=1, gate=True)
    A.c("gate: sum halves, round to bf16, sigmoid, round; lanes<32 -> rt0, lanes>=32 -> rt1")
    A(f"""
    v_add_f32 v82, v82, v83
    v_add_f32 v84, v84, v85
    s_nop 1
    v_permlane32_swap_b32 v82, v84
    s_nop 1
    v_add_f32 v82, v82, v84
    v_cvt_pk_bf16_f32 v82, v82, v82
    v_and_b32 v82, 0xffff0000, v82
    v_mul_f32 v82, {f2u(-LOG2E):#x}, v82
    v_exp_f32 v82, v82
    s_nop 0
    v_add_f32 v82, 1.0, v82
    v_rcp_f32 v82, v82
    s_nop 0
    v_cvt_pk_bf16_f32 v82, v82, v82
    v_and_b32 v82, 0xffff0000, v82
    v_sub_f32 v83, 1.0, v82
    v_cvt_pk_bf16_f32 v83, v83, v83
    v_and_b32 v83, 0xffff0000, v83
    s_lshl_b32 s54, s37, 10
    s_lshl_b32 s55, s36, 8
    s_add_u32 s54, s54, s55
    s_add_u32 s54, s54, {WS_G:#x}
    s_add_u32 s55, s54, 8192
    v_lshlrev_b32 v86, 2, v1
    buffer_store_dword v82, v86, s[28:31], s54 offen
    buffer_store_dword v83, v86, s[28:31], s55 offen
    """)
    A.c("ones region (8KB): wave w of block r writes 256B... every GUG wave writes 1KB: (r*4+w)&7")
    A(f"""
    v_mov_b32 v88, 0x3f803f80
    v_mov_b32 v89, 0x3f803f80
    v_mov_b32 v90, 0x3f803f80
    v_mov_b32 v91, 0x3f803f80
    s_and_b32 s54, s37, 1
    s_lshl_b32 s54, s54, 2
    s_add_u32 s54, s54, s36
    s_lshl_b32 s54, s54, 10
    s_add_u32 s54, s54, {WS_ONES:#x}
    v_lshlrev_b32 v87, 4, v1
    buffer_store_dwordx4 v[88:91], v87, s[28:31], s54 offen
    """)
    gu_epilogue(1)
    fin()

    kernel_desc(A, name, 256)
```

```python
from common import *
G_LDS = 4 * 20480
O_LDS = G_LDS
K2_LDS = G_LDS + 4 * 6144
def launch(): return f"; @launch kernel=k2_kernel grid=(256,1,1) block=(256,1,1) lds={K2_LDS}"
QM = [16, 20, 24, 28]; QE = [32, 34, 36, 38]
S = [40, 56]; P = [72, 80]
def KB(j): return 88 + 4 * (j % 4)
def EB(p): return 104 + 4 * (p % 2)
def VB(j): return 112 + 8 * (j % 4)
NARCH = 152
VK, VE, VOMG = 144, 145, 146
def ar(a, n=1): return f"a{a}" if n == 1 else f"a[{a}:{a+n-1}]"
def OA(q): return 16 * q
def GA(t): return 64 + 16 * t
def GR(g): return 144 + 24 * (g % 3)
NACC = 216
SK, SE, SV0, SV1, SACT, SW = 40, 44, 48, 52, 56, 60

def qk_mfmas(u):
    j, q = divmod(u, 4)
    Sd = S[u % 2]
    return [f"v_mfma_f32_32x32x16_bf16 {vr(Sd,16)}, {vr(KB(j),4)}, {vr(QM[q],4)}, 0",
            f"v_mfma_f32_32x32x8_bf16 {vr(Sd,16)}, {vr(EB(j // 2) + 2 * (j & 1),2)}, {vr(QE[q],2)}, {vr(Sd,16)}"]
def pv_mfmas(u):
    j, q = divmod(u, 4)
    Pb = P[u % 2]
    return [f"v_mfma_f32_32x32x16_bf16 {ar(OA(q),16)}, {vr(VB(j),4)}, {vr(Pb,4)}, {ar(OA(q),16)}",
            f"v_mfma_f32_32x32x16_bf16 {ar(OA(q),16)}, {vr(VB(j)+4,4)}, {vr(Pb+4,4)}, {ar(OA(q),16)}"]
def g_of(u):
    b, r = divmod(u, 16)
    if r == 15: return None
    return (3 * b + r // 5, r % 5)
def g_mfma(u):
    x = g_of(u)
    if x is None: return None
    g, t = x
    return f"v_mfma_f32_32x32x16_bf16 {ar(GA(t),16)}, {ar(GR(g)+4+4*t,4)}, {ar(GR(g),4)}, {ar(GA(t),16)}"

def ldK(j): return ("K", j, [f"buffer_load_dwordx4 {vr(KB(j),4)}, v{VK}, {sr(SK,4)}, 0 offen offset:{(j % 4) * 1024}"])
def ldE(p): return ("E", p, [f"buffer_load_dwordx4 {vr(EB(p),4)}, v{VE}, {sr(SE,4)}, 0 offen offset:{(p % 2) * 512}"])
def ldV(j, f):
    a = j % 4
    return ("V%d" % f, j, [f"buffer_load_dwordx4 {vr(VB(j) + 4 * f,4)}, v4, {sr(SV0 if a < 2 else SV1,4)}, 0 offen offset:{(a % 2) * 1280 + f * 640}"])
def ldW(g, t): return ("W%d" % t, g, [f"buffer_load_dwordx4 {ar(GR(g)+4+4*t,4)}, v8, {sr(SW+4*t,4)}, 0 offen offset:{(g % 3) * 1024}"])
def ldA(g): return ("A", g, [f"buffer_load_dwordx4 {ar(GR(g),4)}, v8, {sr(SACT,4)}, 0 offen offset:{(g % 3) * 1024}"])

POS = [0, 2, 3, 4]
def slot_loads(u):
    j, q = divmod(u, 4)
    d = {p: [] for p in POS}
    if q == 2: d[2].append(ldK(j + 4))
    if q == 3 and j % 2 == 1: d[2].append(ldE(j // 2 + 2))
    if q == 1:
        d[0].append(ldV(j + 3, 0)); d[3].append(ldV(j + 3, 1))
    x = g_of(u)
    if x is not None:
        g, t = x
        d[4].append(ldW(g + 3, t))
    xp = g_of(u - 1)
    if xp is not None and xp[1] == 4:
        d[0 if not d[0] else 2].append(ldA(xp[0] + 3))
    return d
def needs(u):
    n = []
    j1, _ = divmod(u + 1, 4); n += [("K", j1), ("E", j1 // 2)]
    j0, _ = divmod(u - 1, 4); n += [("V0", j0), ("V1", j0)]
    x = g_of(u)
    if x: n += [("W%d" % x[1], x[0]), ("A", x[0])]
    return n
def seq_upto(u, pos_excl):
    seq = []
    for uu in range(u - 64, u + 1):
        d = slot_loads(uu)
        for p in POS:
            if uu == u and p >= pos_excl: break
            for x in d[p]: seq.append((x[0], x[1]))
    return seq
def wait_count(u):
    lastpos = 4 if g_of(u) is not None else 3
    seq = seq_upto(u, lastpos)
    last = max(seq.index(n) for n in needs(u + 1))
    return lastpos, len(seq) - 1 - last

GAPS5 = [("e", 0, 4), ("e", 4, 7, "c", 0, 2), ("e", 7, 11), ("e", 11, 14, "c", 2, 4), ("e", 14, 16, "c", 4, 8)]
GAPS4 = [("e", 0, 4, "c", 0, 1), ("e", 4, 8, "c", 1, 3), ("e", 8, 12, "c", 3, 5), ("e", 12, 16, "c", 5, 8)]
def emit_slot(A, u, pre, extra):
    Sc, Pc = S[u % 2], P[u % 2]
    mf = qk_mfmas(u + 1) + pv_mfmas(u - 1)
    gm = g_mfma(u)
    if gm: mf.append(gm)
    gaps = GAPS5 if gm else GAPS4
    d = slot_loads(u)
    wp, wn = wait_count(u)
    X = os.environ.get("K2X", "")
    for i, m in enumerate(mf):
        if not ("nog" in X and i == 4): A(m)
        if i == wp and "nowait" not in X: A(f"s_waitcnt vmcnt({wn})")
        for l in pre.get(i, []): A(l)
        for x in d.get(i, []):
            if "noload" in X: continue
            if "nogload" in X and x[0][0] in "WA": continue
            if "noaload" in X and x[0][0] in "KEV": continue
            for l in x[2]: A(l)
        for l in extra.get(i, []): A(l)
        gp = gaps[i]
        for e in range(gp[1], gp[2]): A(f"v_exp_f32 v{Sc+e}, v{Sc+e}")
        if len(gp) > 3:
            for c in range(gp[4], gp[5]): A(f"v_cvt_pk_bf16_f32 v{Pc+c}, v{Sc+2*c}, v{Sc+2*c+1}")

def gen_k2(A, **opt):
    name = "k2_kernel"
    kernel_header(A, name)
    stamp(A, 0, 80); stamp_rt(A, 4, 80)
    A(f"""
    s_cmp_ge_u32 s2, 256
    s_cbranch_scc1 K2_END
    s_load_dwordx2 s[10:11], s[0:1], 80
    v_lshrrev_b32 v1, 6, v0
    s_and_b32 s6, s2, 7
    v_readfirstlane_b32 s36, v1
    v_and_b32 v1, 63, v0
    s_lshr_b32 s7, s2, 3
    s_lshr_b32 s37, s7, 3
    s_lshl_b32 s37, s37, 3
    s_add_u32 s37, s37, s6
    s_and_b32 s38, s7, 7
    s_lshl_b32 s38, s38, 3
    s_and_b32 s8, s36, 1
    s_lshl_b32 s8, s8, 2
    s_add_u32 s38, s38, s8
    s_and_b32 s9, s36, 2
    s_add_u32 s33, s38, s9
    s_xor_b32 s9, s9, 2
    s_add_u32 s34, s38, s9
    s_lshr_b32 s35, s36, 1
    s_lshr_b32 s24, s6, 1
    s_lshl_b32 s24, s24, 4
    s_and_b32 s8, s7, 15
    s_add_u32 s24, s24, s8
    s_and_b32 s25, s6, 1
    s_lshl_b32 s25, s25, 1
    s_lshr_b32 s8, s7, 4
    s_add_u32 s25, s25, s8
    v_lshrrev_b32 v2, 5, v1
    v_lshlrev_b32 v3, 4, v1
    v_and_b32 v6, 31, v1
    """)
    A.c("V lane offsets (from the ones block): d<16: hh*256+d*16 ; d<20: 512+hh*64+(d-16)*16 ; d==20: ones ; else OOB")
    A(f"""
    v_lshlrev_b32 v7, 4, v6
    v_lshl_add_u32 v4, v2, 8, v7
    v_lshl_add_u32 v5, v2, 6, v7
    v_add_u32 v5, 256, v5
    v_cmp_gt_u32 vcc, 16, v6
    s_mul_i32 s8, s37, {VHEAD}
    s_add_u32 s8, s8, 8192
    v_cndmask_b32 v4, v5, v4, vcc
    v_add_u32 v9, s8, v4
    s_mul_i32 s9, s35, {32*1280}
    v_add_u32 v4, s9, v9
    v_mov_b32 v5, 0x7f000000
    v_cmp_gt_u32 vcc, 20, v6
    v_mov_b32 v10, 5120
    s_add_u32 s12, s8, s9
    v_cndmask_b32 v4, v5, v4, vcc
    v_cndmask_b32 v9, v5, v9, vcc
    v_cndmask_b32 v5, 0, v10, vcc
    v_cmp_eq_u32 vcc, 20, v6
    s_add_u32 s12, s12, {32*1280}
    s_sub_u32 s13, s12, 2560
    v_cndmask_b32 v4, v4, 0, vcc
    v_cndmask_b32 v9, v9, 0, vcc
    v_mov_b32 v8, v3
    v_mov_b32 v{VK}, v3
    v_mov_b32 v{VE}, v7
    s_lshl_b32 s26, s37, 16
    s_lshl_b32 s27, s37, 14
    s_lshl_b32 s8, s35, 15
    s_add_u32 s14, s26, s8
    s_add_u32 s14, s14, {WS_K:#x}
    s_lshl_b32 s8, s35, 13
    s_add_u32 s15, s27, s8
    s_add_u32 s15, s15, {WS_K + QK_EXTRA:#x}
    s_lshl_b32 s16, s33, 10
    s_add_u32 s16, s16, s26
    s_lshl_b32 s17, s34, 10
    s_add_u32 s17, s17, s26
    s_lshl_b32 s18, s33, 8
    s_add_u32 s18, s18, s27
    s_add_u32 s19, s18, {WS_Q + QK_EXTRA:#x}
    s_lshl_b32 s20, s34, 8
    s_add_u32 s20, s20, s27
    s_add_u32 s20, s20, {WS_Q + QK_EXTRA:#x}
    s_mul_i32 s8, s36, {24*1024}
    s_mul_i32 s21, s24, {96*1024}
    s_add_u32 s21, s21, s8
    s_add_u32 s21, s21, {WS_H:#x}
    s_mul_i32 s22, s25, {5*96*1024}
    s_add_u32 s22, s22, s8
    s_add_u32 s22, s22, {WS_WD:#x}
    s_lshl_b32 s23, s33, 7
    s_add_u32 s23, s23, {WS_G:#x}
    s_lshl_b32 s32, s24, 7
    s_add_u32 s32, s32, {WS_G + 8192:#x}
    v_lshlrev_b32 v13, 2, v6
    s_waitcnt lgkmcnt(0)
    """)
    assert WS_Q == 0
    srd(A, 28, 10, WS_SIZE)
    A(f"""
    buffer_load_dwordx4 v[16:19], v3, s[28:31], s16 offen
    buffer_load_dwordx4 v[40:43], v7, s[28:31], s19 offen
    """)
    srd_off(A, SK, 10, "s14", 32768)
    srd_off(A, SE, 10, "s15", 8192)
    pro = []
    for u in range(-16, 0):
        d = slot_loads(u)
        for p in POS:
            for x in d[p]:
                if x[1] >= 0: pro.append(x)
    def first_key(x): return 0 if (x[0], x[1]) in (("K", 0), ("E", 0)) else 1
    head = [x for x in pro if first_key(x) == 0]; rest = [x for x in pro if first_key(x) == 1]
    for x in head:
        for l in x[2]: A(l)
    A(f"""
    buffer_load_dwordx4 v[20:23], v3, s[28:31], s16 offen offset:1024
    buffer_load_dwordx4 v[24:27], v3, s[28:31], s17 offen
    buffer_load_dwordx4 v[28:31], v3, s[28:31], s17 offen offset:1024
    buffer_load_dwordx4 v[44:47], v7, s[28:31], s20 offen
    buffer_load_dword v14, v13, s[28:31], s23 offen
    buffer_load_dword v15, v13, s[28:31], s23 offen offset:128
    buffer_load_dword v{VOMG}, v13, s[28:31], s32 offen
    """)
    srd_off(A, SV0, 10, f"{WS_ONES:#x}", "s12")
    srd_off(A, SV1, 10, f"{WS_ONES + 2560:#x}", "s13")
    srd_off(A, SACT, 10, "s21", 24576)
    for t in range(5):
        srd_off(A, SW + 4 * t, 10, "s22", 24576)
        if t < 4: A(f"s_add_u32 s22, s22, {96*1024}")
    for x in rest:
        for l in x[2]: A(l)
    A(f"""
    v_add_u32 v{VK}, 4096, v{VK}
    v_add_u32 v{VE}, 1024, v{VE}
    v_add_u32 v8, 3072, v8
    s_mul_i32 s8, s36, 20480
    v_add_u32 v10, s8, v3
    s_mul_i32 s8, s36, 6144
    s_add_u32 s8, s8, {O_LDS}
    v_add_u32 v11, s8, v3
    s_xor_b32 s8, s36, 2
    s_mul_i32 s8, s8, 6144
    s_add_u32 s8, s8, {O_LDS}
    v_add_u32 v12, s8, v3
    s_lshl_b32 s8, s36, 10
    v_add_u32 v13, s8, v3
    """)
    for i in range(144): A(f"v_accvgpr_write_b32 a{i}, 0")
    for i in range(8): A(f"v_mov_b32 v{P[1]+i}, 0")
    for i in range(8): A(f"v_mov_b32 v{VB(3)+i}, 0")
    A("v_cmp_eq_u32 vcc, 0, v2")
    A(f"s_waitcnt vmcnt({len(rest) + 3})")
    for q in range(4):
        for i in range(2):
            A(f"v_cndmask_b32 v{QE[q]+i}, 0, v{40+2*q+i}, vcc")
    A("s_nop 1")
    for m in qk_mfmas(0): A(m)
    names = [(x[0], x[1]) for x in rest]
    nd = [n for n in needs(0) if n in names]
    A(f"s_waitcnt vmcnt({len(rest) - 1 - max(names.index(n) for n in nd)})")
    A("s_mov_b32 s5, 0")
    A("s_nop 7")
    A("s_nop 7")
    stamp(A, 1, 80)
    A(".p2align 6")
    A("K2_LOOP:")
    for u in range(16):
        extra = {}; pre = {}
        d = slot_loads(u)
        for p in POS:
            for x in d[p]:
                k, idx = x[0], x[1]
                if k == "K" and idx % 4 == 3: extra.setdefault(p, []).append(f"v_add_u32 v{VK}, 4096, v{VK}")
                if k == "E" and idx % 2 == 1: extra.setdefault(p, []).append(f"v_add_u32 v{VE}, 1024, v{VE}")
                if k == "V1" and idx % 4 == 3: extra.setdefault(p, []).append("v_add_u32 v4, v4, v5")
                if k == "A" and idx % 3 == 2: extra.setdefault(p, []).append("v_add_u32 v8, 3072, v8")
        if u == 12: pre[0] = ["s_add_u32 s5, s5, 1"]
        if u == 15: pre[2] = ["s_cmp_lt_u32 s5, 8"]
        emit_slot(A, u, pre, extra)
    A("s_cbranch_scc1 K2_LOOP")
    for m in pv_mfmas(15): A(m)
    stamp(A, 2, 80)
    tail(A)
    A.L.append(f""".section .rodata,"a"
.p2align 6
.amdhsa_kernel {name}
  .amdhsa_next_free_vgpr {NARCH + NACC}
  .amdhsa_next_free_sgpr 102
  .amdhsa_accum_offset {NARCH}
  .amdhsa_group_segment_fixed_size 0
  .amdhsa_kernarg_size 88
  .amdhsa_user_sgpr_count 2
  .amdhsa_user_sgpr_kernarg_segment_ptr 1
  .amdhsa_system_sgpr_workgroup_id_x 1
.end_amdhsa_kernel""")

def tail(A):
    O = [88, 104]
    X = [120, 132]
    A.c("tail: publish partials")
    for t in range(5):
        for a in range(4):
            A(f"ds_write_b128 v10, {ar(GA(t)+4*a,4)} offset:{(4*t+a)*1024}")
    for q in range(2):
        for a in range(3):
            A(f"ds_write_b128 v11, {ar(OA(2+q)+4*a,4)} offset:{(3*q+a)*1024}")
    A("s_waitcnt vmcnt(0)")
    for q in range(2):
        for i in range(12): A(f"v_accvgpr_read_b32 v{O[q]+i}, a{OA(q)+i}")
    A(f"""
    s_lshl_b32 s8, s24, 2
    s_add_u32 s8, s8, s25
    s_mul_i32 s8, s8, 20480
    s_add_u32 s8, s8, {WS_B:#x}
    s_add_u32 s9, s8, 4096
    s_add_u32 s12, s8, 8192
    s_add_u32 s13, s8, 12288
    s_add_u32 s14, s8, 16384
    s_waitcnt lgkmcnt(0)
    """)
    stamp(A, 7, 80)
    if STAMP: A("s_waitcnt lgkmcnt(0)")
    A("s_barrier")
    stamp(A, 8, 80)
    if STAMP: A("s_waitcnt lgkmcnt(0)")
    for q in range(2):
        for a in range(3):
            A(f"ds_read_b128 {vr(X[q]+4*a,4)}, v12 offset:{(3*q+a)*1024}")
    def gread(t, b):
        for w in range(4): A(f"ds_read_b128 {vr(b+4*w,4)}, v13 offset:{w*20480 + t*4096}" if w * 20480 + t * 4096 < 65536 else f"ds_read_b128 {vr(b+4*w,4)}, v147 offset:{w*20480 + t*4096 - 40960}")
    def gsum(t, b):
        for k in range(2):
            A(f"v_pk_add_f32 {vr(b+2*k,2)}, {vr(b+2*k,2)}, {vr(b+4+2*k,2)}")
            A(f"v_pk_add_f32 {vr(b+8+2*k,2)}, {vr(b+8+2*k,2)}, {vr(b+12+2*k,2)}")
        for k in range(2):
            A(f"v_pk_add_f32 {vr(b+2*k,2)}, {vr(b+2*k,2)}, {vr(b+8+2*k,2)}")
        for k in range(4): A(f"v_mul_f32 v{b+k}, v{b+k}, v{VOMG}")
        A(f"buffer_store_dwordx4 {vr(b,4)}, v13, s[28:31], s{[8,9,12,13,14][t]} offen")
    A("v_add_u32 v147, 40960, v13")
    gread(0, 16); gread(1, 40)
    A("s_waitcnt lgkmcnt(8)")
    for q in range(2):
        for i in range(6): A(f"v_pk_add_f32 {vr(O[q]+2*i,2)}, {vr(O[q]+2*i,2)}, {vr(X[q]+2*i,2)}")
    A("s_waitcnt lgkmcnt(4)")
    gread(2, 56); gread(3, 72)
    gsum(0, 16)
    A("s_waitcnt lgkmcnt(8)")
    gread(4, 120)
    gsum(1, 40)
    A("s_waitcnt lgkmcnt(8)")
    gsum(2, 56)
    A("s_waitcnt lgkmcnt(4)")
    gsum(3, 72)
    A("s_waitcnt lgkmcnt(0)")
    gsum(4, 120)
    stamp(A, 9, 80)
    A("s_mov_b32 s5, 0")
    A("K2_FIN:")
    A.c("finalize: l = row 20 (reg 8 of upper lanes)")
    T = 32
    for q in range(2):
        A(f"v_mov_b32 v{T+2*q}, v{O[q]+8}")
        A(f"v_mov_b32 v{T+2*q+1}, v{O[q]+8}")
    A("s_nop 1")
    for q in range(2): A(f"v_permlane32_swap_b32 v{T+2*q}, v{T+2*q+1}")
    A("s_nop 1")
    for q in range(2):
        A(f"v_rcp_f32 v{T+2*q}, v{T+2*q+1}")
    A("v_mov_b32 v38, 0")
    for q in range(2):
        A(f"v_mul_f32 v{T+2*q}, v{T+2*q}, v{14+q}")
    for q in range(2):
        for i in range(6): A(f"v_pk_mul_f32 {vr(O[q]+2*i,2)}, {vr(O[q]+2*i,2)}, {vr(T+2*q,2)} op_sel_hi:[1,0]")
    A.c("safety check (fast path only): 2^-30 <= l <= 2^60 and all outputs finite, else redo with the true row max")
    A("v_mov_b32 v39, 0")
    for q in range(2):
        for i in range(6): A(f"v_pk_fma_f32 v[38:39], {vr(O[q]+2*i,2)}, 0, v[38:39] op_sel_hi:[1,0,1]")
    A(f"""
    v_add_f32 v38, v38, v39
    v_min_f32 v36, v33, v35
    v_max_f32 v37, v33, v35
    s_mov_b32 s8, {f2u(2.0**-30):#x}
    s_mov_b32 s9, {f2u(2.0**60):#x}
    v_cmp_le_f32 s[12:13], s8, v36
    v_cmp_ge_f32 s[14:15], s9, v37
    v_cmp_o_f32 s[20:21], v33, v35
    v_cmp_eq_f32 vcc, 0, v38
    s_and_b64 s[12:13], s[12:13], s[14:15]
    s_and_b64 s[12:13], s[12:13], s[20:21]
    s_and_b64 s[12:13], s[12:13], vcc
    s_cmp_eq_u64 s[12:13], -1
    s_cselect_b32 s12, 1, 0
    s_or_b32 s12, s12, s5
    s_cmp_eq_u32 s12, 0
    s_cbranch_scc1 K2_SLOW
    """)
    A.c("stores")
    for q in range(2):
        for i in range(4): A(f"v_cvt_pk_bf16_f32 v{56+4*q+i}, v{O[q]+2*i}, v{O[q]+2*i+1}")
        for i in range(2): A(f"v_cvt_pk_bf16_f32 v{64+2*q+i}, v{O[q]+8+2*i}, v{O[q]+8+2*i+1}")
    A(f"""
    s_lshl_b32 s12, s33, 15
    s_lshl_b32 s13, s37, 10
    s_add_u32 s12, s12, s13
    s_add_u32 s12, s12, {WS_O:#x}
    s_add_u32 s13, s12, 32768
    s_add_u32 s14, s18, {WS_OE:#x}
    v_mul_u32_u24 v68, 0x7f0000, v2
    v_lshl_add_u32 v68, v68, 8, v3
    buffer_store_dwordx4 v[56:59], v3, s[28:31], s12 offen
    buffer_store_dwordx4 v[60:63], v3, s[28:31], s13 offen
    buffer_store_dwordx4 v[64:67], v68, s[28:31], s14 offen
    """)
    stamp(A, 6, 80)
    if STAMP: A("s_waitcnt vmcnt(0)")
    stamp(A, 3, 80); stamp_rt(A, 5, 80)
    stamp_store(A, 10, 36, 1, vt=70, base=80)
    A("K2_END:")
    A("s_endpgm")
    A("K2_SLOW:")
    K, E, V = 120, 124, 128
    SA, SB = 40, 56
    QMs = [16, 20]; QEs = [24, 26]
    A(f"""
    s_mov_b32 s5, 1
    s_waitcnt vmcnt(0)
    s_mov_b32 s{SV0+2}, {8192 + 32*VHEAD}
    buffer_load_dwordx4 v[16:19], v3, s[28:31], s16 offen
    buffer_load_dwordx4 v[20:23], v3, s[28:31], s16 offen offset:1024
    buffer_load_dwordx4 v[24:27], v7, s[28:31], s19 offen
    v_mov_b32 v28, 0xff800000
    v_mov_b32 v29, 0xff800000
    v_lshrrev_b32 v30, 2, v5
    v_cmp_eq_u32 vcc, 0, v2
    s_waitcnt vmcnt(0)
    """)
    for i in range(4): A(f"v_cndmask_b32 v{24+i}, 0, v{24+i}, vcc")
    def slow_qk():
        A(f"""
        s_lshl_b32 s12, s4, 10
        s_add_u32 s12, s12, s26
        s_add_u32 s12, s12, {WS_K:#x}
        s_lshr_b32 s13, s4, 1
        s_lshl_b32 s13, s13, 9
        s_and_b32 s14, s4, 1
        s_lshl_b32 s14, s14, 3
        s_add_u32 s13, s13, s14
        s_add_u32 s13, s13, s27
        s_add_u32 s13, s13, {WS_K + QK_EXTRA:#x}
        buffer_load_dwordx4 {vr(K,4)}, v3, s[28:31], s12 offen
        buffer_load_dwordx2 {vr(E,2)}, v7, s[28:31], s13 offen
        """)
    def slow_mf():
        for q, Sx in ((0, SA), (1, SB)):
            A(f"v_mfma_f32_32x32x16_bf16 {vr(Sx,16)}, {vr(K,4)}, {vr(QMs[q],4)}, 0")
            A(f"v_mfma_f32_32x32x8_bf16 {vr(Sx,16)}, {vr(E,2)}, {vr(QEs[q],2)}, {vr(Sx,16)}")
        A("s_nop 15")
    A("s_mov_b32 s4, 0")
    A("K2_SLOW1:")
    slow_qk()
    A("s_waitcnt vmcnt(0)")
    slow_mf()
    for q, Sx in ((0, SA), (1, SB)):
        for i in range(8): A(f"v_max3_f32 v{28+q}, v{Sx+2*i}, v{Sx+2*i+1}, v{28+q}")
    A("""
    s_add_u32 s4, s4, 1
    s_cmp_lt_u32 s4, 64
    s_cbranch_scc1 K2_SLOW1
    v_mov_b32 v32, v28
    v_mov_b32 v33, v28
    v_mov_b32 v34, v29
    v_mov_b32 v35, v29
    s_nop 1
    v_permlane32_swap_b32 v32, v33
    v_permlane32_swap_b32 v34, v35
    s_nop 1
    v_max_f32 v28, v32, v33
    v_max_f32 v29, v34, v35
    s_mov_b32 s4, 0
    """)
    for i in range(32): A(f"v_mov_b32 v{O[0]+i}, 0")
    A("K2_SLOW2:")
    slow_qk()
    A(f"buffer_load_dwordx4 {vr(V,4)}, v9, {sr(SV0,4)}, 0 offen")
    A(f"buffer_load_dwordx4 {vr(V+4,4)}, v9, {sr(SV0,4)}, 0 offen offset:640")
    A("v_add_u32 v9, v9, v30")
    A("s_waitcnt vmcnt(0)")
    slow_mf()
    for q, Sx in ((0, SA), (1, SB)):
        for i in range(16): A(f"v_sub_f32 v{Sx+i}, v{Sx+i}, v{28+q}")
        for i in range(16): A(f"v_exp_f32 v{Sx+i}, v{Sx+i}")
        A("s_nop 0")
        for i in range(8): A(f"v_cvt_pk_bf16_f32 v{Sx+i}, v{Sx+2*i}, v{Sx+2*i+1}")
        A("s_nop 1")
        A(f"v_mfma_f32_32x32x16_bf16 {vr(O[q],16)}, {vr(V,4)}, {vr(Sx,4)}, {vr(O[q],16)}")
        A(f"v_mfma_f32_32x32x16_bf16 {vr(O[q],16)}, {vr(V+4,4)}, {vr(Sx+4,4)}, {vr(O[q],16)}")
    A("""
    s_add_u32 s4, s4, 1
    s_cmp_lt_u32 s4, 64
    s_cbranch_scc1 K2_SLOW2
    s_nop 15
    s_branch K2_FIN
    """)
```

```python
from common import *
RS = 656
K3_LDS = 5 * 32 * RS
def launch(): return f"; @launch kernel=k3_kernel grid=(256,1,1) block=(256,1,1) lds={K3_LDS}"
ACC = 16
BP = ACC + 80
AD = BP + 20
NARCH = AD + 12
def ar(a, n=1): return f"a{a}" if n == 1 else f"a[{a}:{a+n-1}]"
def ring(i): return 24 * i
NACC = 240

def gen_k3(A, **opt):
    name = "k3_kernel"
    kernel_header(A, name)
    stamp(A, 0); stamp_rt(A, 4)
    A(f"""
    s_cmp_ge_u32 s2, 256
    s_cbranch_scc1 K3_END
    s_load_dwordx2 s[10:11], s[0:1], 80
    s_load_dwordx2 s[8:9], s[0:1], 64
    v_lshrrev_b32 v1, 6, v0
    s_and_b32 s39, s2, 7
    v_readfirstlane_b32 s36, v1
    v_and_b32 v1, 63, v0
    s_lshr_b32 s40, s2, 3
    s_lshr_b32 s37, s39, 1
    s_lshl_b32 s37, s37, 4
    s_and_b32 s41, s40, 15
    s_add_u32 s37, s37, s41
    s_and_b32 s38, s39, 1
    s_lshl_b32 s38, s38, 1
    s_lshr_b32 s41, s40, 4
    s_add_u32 s38, s38, s41
    v_lshrrev_b32 v2, 5, v1
    v_lshlrev_b32 v3, 4, v1
    v_and_b32 v4, 31, v1
    v_lshlrev_b32 v5, 4, v4
    v_lshl_add_u32 v5, v2, 15, v5
    v_add_u32 v8, 4096, v3
    s_lshl_b32 s42, s36, 13
    s_lshl_b32 s50, s37, 15
    s_add_u32 s50, s50, s42
    s_add_u32 s50, s50, {WS_O:#x}
    s_mul_i32 s41, s38, {5*40*1024}
    s_add_u32 s41, s41, {WS_WO:#x}
    s_add_u32 s43, s41, s42
    """)
    for t in range(5): A(f"s_add_u32 s{52+t}, s43, {t*40*1024}")
    A(f"""
    s_lshl_b32 s42, s36, 11
    s_add_u32 s43, s41, s42
    s_add_u32 s43, s43, {32*1024}
    """)
    for t in range(5): A(f"s_add_u32 s{58+t}, s43, {t*40*1024}")
    A(f"""
    s_lshl_b32 s63, s36, 17
    s_lshr_b32 s42, s37, 1
    s_lshl_b32 s42, s42, 9
    s_add_u32 s63, s63, s42
    s_and_b32 s42, s37, 1
    s_lshl_b32 s42, s42, 3
    s_add_u32 s63, s63, s42
    s_add_u32 s63, s63, {WS_OE:#x}
    s_add_u32 s64, s63, 16384
    s_add_u32 s65, s63, 65536
    s_add_u32 s66, s63, {65536+16384}
    s_waitcnt lgkmcnt(0)
    """)
    srd(A, 28, 10, WS_SIZE)
    srd(A, 32, 8, 2048 * 1280)
    NS = 10
    cnt = {}
    def issue(i):
        r = ring(i)
        if i < 8:
            va = "v3" if i < 4 else "v8"
            o = (i % 4) * 1024
            A(f"buffer_load_dwordx4 {ar(r,4)}, {va}, s[28:31], s50 offen offset:{o}")
            for t in range(5): A(f"buffer_load_dwordx4 {ar(r+4+4*t,4)}, {va}, s[28:31], s{52+t} offen offset:{o}")
            cnt[i] = 6
        else:
            k = i - 8
            A(f"buffer_load_dwordx2 {ar(r,2)}, v5, s[28:31], s{63+2*k} offen")
            A(f"buffer_load_dwordx2 {ar(r+2,2)}, v5, s[28:31], s{64+2*k} offen")
            for t in range(5): A(f"buffer_load_dwordx4 {ar(r+4+4*t,4)}, v3, s[28:31], s{58+t} offen offset:{k*1024}")
            cnt[i] = 7
    for i in range(9): issue(i)
    A(f"""
    v_mul_u32_u24 v9, {RS}, v4
    v_lshl_add_u32 v9, v2, 4, v9
    s_mul_i32 s42, s36, {32*RS}
    v_add_u32 v9, s42, v9
    s_movk_i32 s43, 1639
    s_lshl_b32 s44, s37, 2
    s_add_u32 s44, s44, s38
    s_mul_i32 s44, s44, 20480
    s_lshl_b32 s45, s36, 10
    s_add_u32 s44, s44, s45
    s_add_u32 s44, s44, {WS_B:#x}
    v_mul_u32_u24 v14, {RS}, v4
    v_lshl_add_u32 v14, v2, 4, v14
    s_lshl_b32 s45, s36, 5
    s_add_u32 s45, s45, {4*32*RS}
    v_add_u32 v14, s45, v14
    """)
    for i in range(5):
        A(f"""
        v_add_u32 v10, {256*i}, v0
        v_mul_lo_u32 v11, v10, s43
        v_lshrrev_b32 v11, 16, v11
        v_mul_u32_u24 v12, 40, v11
        v_sub_u32 v12, v10, v12
        v_mul_u32_u24 v13, {RS}, v11
        v_lshl_add_u32 v{AD+i}, v12, 4, v13
        v_mul_u32_u24 v13, 1280, v11
        v_lshl_add_u32 v{AD+5+i}, v12, 3, v13
        """)
    stamp(A, 1)
    nb = 0
    for i in range(NS):
        out = sum(cnt.get(j, 0) for j in range(i + 1, NS)) + nb
        A(f"s_waitcnt vmcnt({out})")
        r = ring(i)
        for t in range(5):
            c = "0" if i == 0 else vr(ACC + 16 * t, 16)
            A(f"v_mfma_f32_32x32x16_bf16 {vr(ACC+16*t,16)}, {ar(r+4+4*t,4)}, {ar(r,4)}, {c}")
        if i == 0: issue(9)
        if i == 1:
            for k in range(5):
                A(f"buffer_load_dwordx4 {vr(BP+4*k,4)}, v3, s[28:31], s44 offen")
                A(f"s_add_u32 s44, s44, 4096")
            nb = 5
    stamp(A, 2)
    A(f"""
    s_mul_i32 s42, s37, {32*1280}
    s_mul_i32 s43, s38, 320
    s_add_u32 s42, s42, s43
    s_nop 7
    s_nop 3
    """)
    for t in range(5):
        for a in range(4):
            A(f"ds_write_b128 v9, {vr(ACC+16*t+4*a,4)} offset:{(32*t+8*a)*4}")
    A("s_waitcnt vmcnt(0)")
    for t in range(5):
        A(f"ds_write_b128 v14, {vr(BP+4*t,4)} offset:{t*128}")
    for i in range(5): A(f"v_add_u32 v{5+i}, {4*32*RS}, v{AD+i}")
    A("""
    s_waitcnt lgkmcnt(0)
    s_barrier
    """)
    for i in range(5):
        A(f"ds_read_b128 {vr(BP+4*i,4)}, v{5+i}")
        for w in range(4):
            A(f"ds_read_b128 {vr(ACC+16*i+4*w,4)}, v{AD+i} offset:{w*32*RS}")
    for i in range(5):
        b = ACC + 16 * i
        A(f"s_waitcnt lgkmcnt({min(15, 20-5*i)})" if i < 4 else "s_waitcnt lgkmcnt(0)")
        for k in range(2):
            A(f"v_pk_add_f32 {vr(b+2*k,2)}, {vr(b+2*k,2)}, {vr(b+4+2*k,2)}")
            A(f"v_pk_add_f32 {vr(b+8+2*k,2)}, {vr(b+8+2*k,2)}, {vr(b+12+2*k,2)}")
        for k in range(2):
            A(f"v_pk_add_f32 {vr(b+2*k,2)}, {vr(b+2*k,2)}, {vr(BP+4*i+2*k,2)}")
        for k in range(2):
            A(f"v_pk_add_f32 {vr(b+2*k,2)}, {vr(b+2*k,2)}, {vr(b+8+2*k,2)}")
        A(f"v_cvt_pk_bf16_f32 v{b+4}, v{b}, v{b+1}")
        A(f"v_cvt_pk_bf16_f32 v{b+5}, v{b+2}, v{b+3}")
        A(f"buffer_store_dwordx2 {vr(b+4,2)}, v{AD+5+i}, s[32:35], s42 offen")
    if STAMP: A("s_waitcnt vmcnt(0)")
    stamp(A, 3); stamp_rt(A, 5)
    stamp_store(A, 9, 36, 2, vt=10)
    A("K3_END:")
    A("s_endpgm")
    na = (NARCH + 3) // 4 * 4
    A.L.append(f""".section .rodata,"a"
.p2align 6
.amdhsa_kernel {name}
  .amdhsa_next_free_vgpr {na + NACC}
  .amdhsa_next_free_sgpr 96
  .amdhsa_accum_offset {na}
  .amdhsa_group_segment_fixed_size 0
  .amdhsa_kernarg_size 88
  .amdhsa_user_sgpr_count 2
  .amdhsa_user_sgpr_kernarg_segment_ptr 1
  .amdhsa_system_sgpr_workgroup_id_x 1
.end_amdhsa_kernel""")
```

```python
import math, struct

NAME = "gated_mix__softmax_full_mha__glu_gated_geglu__prompt"
WS_Q  = 0x0000000
WS_K  = 0x0280000
QK_EXTRA = 0x200000
WS_V  = 0x0510000
VHEAD = 64 * 1280
WS_ONES = WS_V - 8192
WS_H  = 0x0900000
WS_O  = 0x0F00000
WS_OE = WS_O + 0x200000
WS_WD = 0x1180000
WS_WO = WS_WD + 1920 * 1024
WS_G  = 0x1480000
WS_B  = 0x1500000
WS_SIZE = 0x2000000

def f2u(x):
    return struct.unpack("<I", struct.pack("<f", x))[0]

LOG2E = 1.4426950408889634
QSCALE = LOG2E / math.sqrt(20.0)

class Asm:
    def __init__(self):
        self.L = []
    def __call__(self, s, *a):
        for line in s.split("\n"):
            line = line.strip()
            if not line: continue
            if line.endswith(":") or line.startswith("."):
                self.L.append(line)
            else:
                self.L.append("    " + line)
    def c(self, s):
        self.L.append("    ; " + s)
    def text(self):
        return "\n".join(self.L) + "\n"

def vr(a, n=1):
    return f"v{a}" if n == 1 else f"v[{a}:{a+n-1}]"
def sr(a, n=1):
    return f"s{a}" if n == 1 else f"s[{a}:{a+n-1}]"

def kernel_header(A, name):
    A(f""".text
.globl {name}
.p2align 8
.type {name},@function
{name}:""")

def kernel_desc(A, name, nvgpr, nsgpr=96):
    acc = (nvgpr + 3) // 4 * 4
    A.L.append(f""".section .rodata,"a"
.p2align 6
.amdhsa_kernel {name}
  .amdhsa_next_free_vgpr {nvgpr}
  .amdhsa_next_free_sgpr {nsgpr}
  .amdhsa_accum_offset {acc}
  .amdhsa_group_segment_fixed_size 0
  .amdhsa_kernarg_size 88
  .amdhsa_user_sgpr_count 2
  .amdhsa_user_sgpr_kernarg_segment_ptr 1
  .amdhsa_system_sgpr_workgroup_id_x 1
.end_amdhsa_kernel""")

def srd(A, d, base, nbytes):
    A(f"s_mov_b32 s{d}, s{base}")
    A(f"s_mov_b32 s{d+1}, s{base+1}")
    A(f"s_mov_b32 s{d+2}, {nbytes:#x}")
    A(f"s_mov_b32 s{d+3}, 0x00020000")

WS_DBG = 0x1C00000
import os
STAMP = bool(int(os.environ.get("STAMP", "0")))
def stamp(A, i, base=70):
    if STAMP:
        A(f"s_memtime s[{base+2*i}:{base+1+2*i}]")
def stamp_rt(A, i, base=70):
    if STAMP:
        A(f"s_memrealtime s[{base+2*i}:{base+1+2*i}]")
def stamp_store(A, n, wave_sgpr, kidx, srd=28, vt=250, base=70):
    if not STAMP: return
    A("s_waitcnt lgkmcnt(0)")
    if os.environ.get("DBGSTAMP"):
        A("s_load_dwordx2 s[0:1], s[0:1], 72")
        A("s_waitcnt lgkmcnt(0)")
        A(f"s_sub_u32 s0, s0, {512*kidx}")
        A("s_subb_u32 s1, s1, 0")
        A(f"v_mov_b32 v{vt}, 0")
        A(f"s_not_b32 s3, s{base+8}")
        A(f"v_mov_b32 v{vt+1}, s3")
        A(f"global_atomic_umax v{vt}, v{vt+1}, s[0:1] offset:{kidx*16}")
        A(f"v_mov_b32 v{vt+1}, s{base+10}")
        A(f"global_atomic_umax v{vt}, v{vt+1}, s[0:1] offset:{kidx*16+4}")
        for i in (1, 2):
            A(f"s_sub_u32 s3, s{base+2*i}, s{base}")
            A(f"v_mov_b32 v{vt+1}, s3")
            A(f"global_atomic_umax v{vt}, v{vt+1}, s[0:1] offset:{kidx*16+4+4*i}")
        return
    A(f"s_lshl_b32 s3, s2, 4")
    A(f"s_add_u32 s3, s3, s{wave_sgpr}")
    A(f"s_lshl_b32 s3, s3, 6")
    A(f"s_add_u32 s3, s3, {WS_DBG + kidx*0x40000:#x}")
    A(f"v_mov_b32 v{vt}, 0")
    for i in range(n):
        A(f"v_mov_b32 v{vt+1}, s{base+2*i}")
        A(f"buffer_store_dword v{vt+1}, v{vt}, s[{srd}:{srd+3}], s3 offen offset:{4*i}")
        A("s_nop 1")

def srd_off(A, d, base, off_sgpr, nbytes):
    A(f"s_add_u32 s{d}, s{base}, {off_sgpr}")
    A(f"s_addc_u32 s{d+1}, s{base+1}, 0")
    A(f"s_mov_b32 s{d+2}, {nbytes}")
    A(f"s_mov_b32 s{d+3}, 0x00020000")
```

```python
import math, struct

NAME = "gated_mix__softmax_full_mha__glu_gated_geglu__prompt"
WS_Q  = 0x0000000
WS_K  = 0x0280000
QK_EXTRA = 0x200000
WS_V  = 0x0510000
VHEAD = 64 * 1280
WS_ONES = WS_V - 8192
WS_H  = 0x0900000
WS_O  = 0x0F00000
WS_OE = WS_O + 0x200000
WS_WD = 0x1180000
WS_WO = WS_WD + 1920 * 1024
WS_G  = 0x1480000
WS_B  = 0x1500000
WS_SIZE = 0x2000000

def f2u(x):
    return struct.unpack("<I", struct.pack("<f", x))[0]

LOG2E = 1.4426950408889634
QSCALE = LOG2E / math.sqrt(20.0)

class Asm:
    def __init__(self):
        self.L = []
    def __call__(self, s, *a):
        for line in s.split("\n"):
            line = line.strip()
            if not line: continue
            if line.endswith(":") or line.startswith("."):
                self.L.append(line)
            else:
                self.L.append("    " + line)
    def c(self, s):
        self.L.append("    ; " + s)
    def text(self):
        return "\n".join(self.L) + "\n"

def vr(a, n=1):
    return f"v{a}" if n == 1 else f"v[{a}:{a+n-1}]"
def sr(a, n=1):
    return f"s{a}" if n == 1 else f"s[{a}:{a+n-1}]"

def kernel_header(A, name):
    A(f""".text
.globl {name}
.p2align 8
.type {name},@function
{name}:""")

def kernel_desc(A, name, nvgpr, nsgpr=96):
    acc = (nvgpr + 3) // 4 * 4
    A.L.append(f""".section .rodata,"a"
.p2align 6
.amdhsa_kernel {name}
  .amdhsa_next_free_vgpr {nvgpr}
  .amdhsa_next_free_sgpr {nsgpr}
  .amdhsa_accum_offset {acc}
  .amdhsa_group_segment_fixed_size 0
  .amdhsa_kernarg_size 88
  .amdhsa_user_sgpr_count 2
  .amdhsa_user_sgpr_kernarg_segment_ptr 1
  .amdhsa_system_sgpr_workgroup_id_x 1
.end_amdhsa_kernel""")

def srd(A, d, base, nbytes):
    A(f"s_mov_b32 s{d}, s{base}")
    A(f"s_mov_b32 s{d+1}, s{base+1}")
    A(f"s_mov_b32 s{d+2}, {nbytes:#x}")
    A(f"s_mov_b32 s{d+3}, 0x00020000")

WS_DBG = 0x1C00000
import os
STAMP = bool(int(os.environ.get("STAMP", "0")))
def stamp(A, i, base=70):
    if STAMP:
        A(f"s_memtime s[{base+2*i}:{base+1+2*i}]")
def stamp_rt(A, i, base=70):
    if STAMP:
        A(f"s_memrealtime s[{base+2*i}:{base+1+2*i}]")
def stamp_store(A, n, wave_sgpr, kidx, srd=28, vt=250, base=70):
    if not STAMP: return
    A("s_waitcnt lgkmcnt(0)")
    if os.environ.get("DBGSTAMP"):
        A("s_load_dwordx2 s[0:1], s[0:1], 72")
        A("s_waitcnt lgkmcnt(0)")
        A(f"s_sub_u32 s0, s0, {512*kidx}")
        A("s_subb_u32 s1, s1, 0")
        A("s_mov_b64 exec, 1")
        A(f"s_cmp_lg_u32 s{wave_sgpr}, 0")
        A(f"s_cbranch_scc1 DBG_SKIP_{kidx}_{len(A.L)}")
        lab = f"DBG_SKIP_{kidx}_{len(A.L)-1}"
        for rep in range(3):
            A(f"v_mov_b32 v{vt}, {512*rep}")
            A(f"s_not_b32 s3, s{base+8}")
            A(f"v_mov_b32 v{vt+1}, s3")
            A(f"global_atomic_umax v{vt}, v{vt+1}, s[0:1] offset:{kidx*16}")
            A(f"v_mov_b32 v{vt+1}, s{base+10}")
            A(f"global_atomic_umax v{vt}, v{vt+1}, s[0:1] offset:{kidx*16+4}")
            for i in (1, 2):
                A(f"s_sub_u32 s3, s{base+2*i}, s{base}")
                A(f"v_mov_b32 v{vt+1}, s3")
                A(f"global_atomic_umax v{vt}, v{vt+1}, s[0:1] offset:{kidx*16+4+4*i}")
        A(lab + ":")
        return
    A(f"s_lshl_b32 s3, s2, 4")
    A(f"s_add_u32 s3, s3, s{wave_sgpr}")
    A(f"s_lshl_b32 s3, s3, 6")
    A(f"s_add_u32 s3, s3, {WS_DBG + kidx*0x40000:#x}")
    A(f"v_mov_b32 v{vt}, 0")
    for i in range(n):
        A(f"v_mov_b32 v{vt+1}, s{base+2*i}")
        A(f"buffer_store_dword v{vt+1}, v{vt}, s[{srd}:{srd+3}], s3 offen offset:{4*i}")
        A("s_nop 1")

def srd_off(A, d, base, off_sgpr, nbytes):
    A(f"s_add_u32 s{d}, s{base}, {off_sgpr}")
    A(f"s_addc_u32 s{d+1}, s{base+1}, 0")
    A(f"s_mov_b32 s{d+2}, {nbytes}")
    A(f"s_mov_b32 s{d+3}, 0x00020000")
```

```python
import math, struct

NAME = "gated_mix__softmax_full_mha__glu_gated_geglu__prompt"
WS_Q  = 0x0000000
WS_K  = 0x0280000
WS_V  = 0x0510000
VHEAD = 64 * 1280
WS_ONES = WS_V - 8192
WS_H  = 0x0900000
WS_O  = 0x0F00000
WS_WD = 0x1180000
WS_WO = WS_WD + 1920 * 1024
WS_G  = 0x1480000
WS_B  = 0x1500000
WS_SIZE = 0x2000000

def f2u(x):
    return struct.unpack("<I", struct.pack("<f", x))[0]

LOG2E = 1.4426950408889634
QSCALE = LOG2E / math.sqrt(20.0)

class Asm:
    def __init__(self):
        self.L = []
    def __call__(self, s, *a):
        for line in s.split("\n"):
            line = line.strip()
            if not line: continue
            if line.endswith(":") or line.startswith("."):
                self.L.append(line)
            else:
                self.L.append("    " + line)
    def c(self, s):
        self.L.append("    ; " + s)
    def text(self):
        return "\n".join(self.L) + "\n"

def vr(a, n=1):
    return f"v{a}" if n == 1 else f"v[{a}:{a+n-1}]"
def sr(a, n=1):
    return f"s{a}" if n == 1 else f"s[{a}:{a+n-1}]"

def kernel_header(A, name):
    A(f""".text
.globl {name}
.p2align 8
.type {name},@function
{name}:""")

def kernel_desc(A, name, nvgpr, nsgpr=96):
    acc = (nvgpr + 3) // 4 * 4
    A.L.append(f""".section .rodata,"a"
.p2align 6
.amdhsa_kernel {name}
  .amdhsa_next_free_vgpr {nvgpr}
  .amdhsa_next_free_sgpr {nsgpr}
  .amdhsa_accum_offset {acc}
  .amdhsa_group_segment_fixed_size 0
  .amdhsa_kernarg_size 88
  .amdhsa_user_sgpr_count 2
  .amdhsa_user_sgpr_kernarg_segment_ptr 1
  .amdhsa_system_sgpr_workgroup_id_x 1
.end_amdhsa_kernel""")

def srd(A, d, base, nbytes):
    A(f"s_mov_b32 s{d}, s{base}")
    A(f"s_mov_b32 s{d+1}, s{base+1}")
    A(f"s_mov_b32 s{d+2}, {nbytes:#x}")
    A(f"s_mov_b32 s{d+3}, 0x00020000")

WS_DBG = 0x1C00000
import os
STAMP = bool(int(os.environ.get("STAMP", "0")))
def stamp(A, i, base=70):
    if STAMP:
        A(f"s_memtime s[{base+2*i}:{base+1+2*i}]")
def stamp_rt(A, i, base=70):
    if STAMP:
        A(f"s_memrealtime s[{base+2*i}:{base+1+2*i}]")
def stamp_store(A, n, wave_sgpr, kidx, srd=28, vt=250, base=70):
    if not STAMP: return
    A("s_waitcnt lgkmcnt(0)")
    if os.environ.get("DBGSTAMP"):
        A("s_load_dwordx2 s[0:1], s[0:1], 72")
        A("s_waitcnt lgkmcnt(0)")
        A(f"s_sub_u32 s0, s0, {512*kidx}")
        A("s_subb_u32 s1, s1, 0")
        A("s_mov_b64 exec, 1")
        A(f"s_cmp_lg_u32 s{wave_sgpr}, 0")
        A(f"s_cbranch_scc1 DBG_SKIP_{kidx}_{len(A.L)}")
        lab = f"DBG_SKIP_{kidx}_{len(A.L)-1}"
        for rep in range(3):
            A(f"v_mov_b32 v{vt}, {512*rep}")
            A(f"s_not_b32 s3, s{base+8}")
            A(f"v_mov_b32 v{vt+1}, s3")
            A(f"global_atomic_umax v{vt}, v{vt+1}, s[0:1] offset:{kidx*16}")
            A(f"v_mov_b32 v{vt+1}, s{base+10}")
            A(f"global_atomic_umax v{vt}, v{vt+1}, s[0:1] offset:{kidx*16+4}")
            for i in (1, 2):
                A(f"s_sub_u32 s3, s{base+2*i}, s{base}")
                A(f"v_mov_b32 v{vt+1}, s3")
                A(f"global_atomic_umax v{vt}, v{vt+1}, s[0:1] offset:{kidx*16+4+4*i}")
        A(lab + ":")
        return
    A(f"s_lshl_b32 s3, s2, 4")
    A(f"s_add_u32 s3, s3, s{wave_sgpr}")
    A(f"s_lshl_b32 s3, s3, 6")
    A(f"s_add_u32 s3, s3, {WS_DBG + kidx*0x40000:#x}")
    A(f"v_mov_b32 v{vt}, 0")
    A(f"s_getreg_b32 s0, hwreg(HW_REG_XCC_ID)")
    A(f"v_mov_b32 v{vt+1}, s0")
    A(f"buffer_store_dword v{vt+1}, v{vt}, s[{srd}:{srd+3}], s3 offen offset:60")
    A("s_nop 1")
    for i in range(n):
        A(f"v_mov_b32 v{vt+1}, s{base+2*i}")
        A(f"buffer_store_dword v{vt+1}, v{vt}, s[{srd}:{srd+3}], s3 offen offset:{4*i}")
        A("s_nop 1")

def srd_off(A, d, base, off_sgpr, nbytes):
    A(f"s_add_u32 s{d}, s{base}, {off_sgpr}")
    A(f"s_addc_u32 s{d+1}, s{base+1}, 0")
    A(f"s_mov_b32 s{d+2}, {nbytes}")
    A(f"s_mov_b32 s{d+3}, 0x00020000")
```

```python
from common import *

XB = 16384
STAGE = XB + 20480
K1_LDS = 3 * STAGE
RA = int(os.environ.get('K1RA', '5'))
RB = int(os.environ.get('K1RB', '0'))
STQ = os.environ.get('K1STQ', 'sc1')
STS = os.environ.get('K1STS', '')
TOUCH = int(os.environ.get('K1TOUCH', '1'))
ACC0 = 48
NV = 128
def ar(a, n=1): return f"a{a}" if n == 1 else f"a[{a}:{a+n-1}]"
def acc(rt, tt): return ACC0 + 16 * (2 * rt + tt)
ACCE = ACC0 + 64
XA = 4
XB2 = 16
WA = 8; WA2 = 3
def XFR(buf, rt): return 4 * (2 * buf + rt)
def WFR(buf, t): return 16 + (buf * 3 + t) * 4
NACC = 40

def emit_reads(buf, ks):
    R = [f"ds_read_b128 {ar(XFR(buf, 0), 4)}, v{XA + ks}"]
    for t in range(3):
        for j2 in range(2):
            off = ks * 5120 + j2 * 1280 + (t * 40 if t < 2 else 0)
            R.append(f"ds_read_b64_tr_b16 {ar(WFR(buf, t) + 2 * j2, 2)}, v{WA2 if t == 2 else WA} offset:{off}")
    R.insert(3, f"ds_read_b128 {ar(XFR(buf, 1), 4)}, v{XB2 + ks}")
    return R

def consumer_loop(A, kind, lab):
    A("s_barrier")
    stamp(A, 1)
    for r in emit_reads(0, 0): A(r)
    A("s_mov_b32 s44, 0")
    A(".p2align 6")
    A(f"{lab}:")
    for ks in range(4):
        buf = ks & 1
        reads = emit_reads(buf ^ 1, (ks + 1) & 3)
        def mf(d, t, rt):
            if kind == "V": return f"v_mfma_f32_32x32x16_bf16 {vr(d,16)}, {ar(XFR(buf,rt),4)}, {ar(WFR(buf,t),4)}, {vr(d,16)}"
            return f"v_mfma_f32_32x32x16_bf16 {vr(d,16)}, {ar(WFR(buf,t),4)}, {ar(XFR(buf,rt),4)}, {vr(d,16)}"
        M = [mf(acc(0,0),0,0), mf(acc(1,0),0,1), mf(acc(0,1),1,0), mf(acc(1,1),1,1), mf(ACCE,2,0)]
        if ks == 3:
            A("s_waitcnt lgkmcnt(0)")
            A(M[0])
            A("s_cmp_eq_u32 s45, 2")
            A(f"s_mov_b32 s47, {STAGE}")
            A(f"s_cmov_b32 s47, {(-2 * STAGE) & 0xffffffff:#x}")
            A("s_add_u32 s45, s45, 1")
            A("s_cmp_eq_u32 s45, 3")
            A("s_cselect_b32 s45, 0, s45")
            A(f"v_add_u32 v{XA}, s47, v{XA}")
            A(f"v_add_u32 v{WA}, s47, v{WA}")
            A(f"v_add_u32 v{XB2}, s47, v{XB2}")
            A(f"v_add_u32 v{WA2}, s47, v{WA2}")
            A("s_barrier")
            A(M[1])
            for r in reads[0:3]: A(r)
            A(M[2])
            for r in reads[3:6]: A(r)
            A(M[3])
            for r in reads[6:8]: A(r)
            for i in range(1, 4): A(f"v_add_u32 v{XA+i}, s47, v{XA+i}")
            A(M[4])
            for i in range(1, 4): A(f"v_add_u32 v{XB2+i}, s47, v{XB2+i}")
        else:
            A("s_waitcnt lgkmcnt(5)")
            A(M[0])
            A("s_waitcnt lgkmcnt(4)")
            for r in reads[0:2]: A(r)
            A(M[1])
            A("s_waitcnt lgkmcnt(4)")
            for r in reads[2:4]: A(r)
            A(M[2])
            for r in reads[4:6]: A(r)
            A(M[3])
            A("s_waitcnt lgkmcnt(6)")
            for r in reads[6:8]: A(r)
            A(M[4])
    A("s_add_u32 s44, s44, 1")
    A("s_cmp_lt_u32 s44, 10")
    A(f"s_cbranch_scc1 {lab}")
    A("s_waitcnt lgkmcnt(0)")
    A("s_nop 15")
    stamp(A, 2)

def launch(): return f"; @launch kernel=k1_kernel grid=(256,1,1) block=(512,1,1) lds={K1_LDS}"

def gen_k1(A):
    name = "k1_kernel"
    kernel_header(A, name)
    stamp(A, 0)
    stamp_rt(A, 4)
    def fin(vt=10):
        stamp(A, 7)
        if STAMP: A("s_waitcnt vmcnt(0)")
        stamp(A, 3)
        stamp_rt(A, 5)
        stamp_store(A, 9, 36, 0, vt=vt)
        A("s_endpgm")
    A("""
    s_cmp_ge_u32 s2, 256
    s_cbranch_scc1 K1_END
    s_load_dwordx4 s[4:7], s[0:1], 0
    s_load_dwordx2 s[8:9], s[0:1], 16
    s_load_dwordx8 s[12:19], s[0:1], 32
    s_load_dwordx2 s[10:11], s[0:1], 80
    v_lshrrev_b32 v1, 6, v0
    s_and_b32 s39, s2, 7
    v_readfirstlane_b32 s36, v1
    v_and_b32 v1, 63, v0
    s_lshr_b32 s40, s2, 3
    v_lshrrev_b32 v2, 5, v1
    s_cmp_ge_u32 s40, 24
    s_cbranch_scc1 K1_AUX
    s_lshr_b32 s37, s39, 2
    s_lshl_b32 s37, s37, 3
    s_and_b32 s41, s40, 7
    s_add_u32 s37, s37, s41
    s_and_b32 s38, s39, 3
    s_lshr_b32 s42, s40, 3
    s_lshl_b32 s43, s42, 2
    s_add_u32 s38, s38, s43
    s_cmp_lt_u32 s36, 4
    s_cbranch_scc1 K1_CONS
    """)
    A(f"""
    s_mul_i32 s55, s41, {RA}
    s_mul_i32 s56, s42, {RB}
    s_add_u32 s55, s55, s56
    s_lshr_b32 s55, s55, 2
    s_cmp_ge_u32 s55, 10
    s_cselect_b32 s56, 10, 0
    s_sub_u32 s47, s55, s56
    s_sub_u32 s40, s36, 4
    v_lshrrev_b32 v4, 3, v1
    s_lshl_b32 s41, s40, 5
    v_add_u32 v4, s41, v4
    v_mul_u32_u24 v4, 1280, v4
    v_and_b32 v5, 7, v1
    v_lshrrev_b32 v6, 4, v1
    v_xor_b32 v5, v5, v6
    v_lshl_add_u32 v10, v5, 4, v4
    v_xor_b32 v11, 64, v10
    s_mul_i32 s41, s37, {128*1280}
    s_lshl_b32 s55, s47, 7
    s_add_u32 s41, s41, s55
    s_lshl_b32 s48, s40, 12
    s_mul_i32 s49, s40, 5120
    s_add_u32 s49, s49, {XB}
    s_mul_i32 s42, s38, 320
    s_mul_i32 s55, s47, {64*3840}
    s_add_u32 s42, s42, s55
    s_mul_i32 s53, s40, 320
    s_mov_b32 s43, 0
    v_add_u32 v4, s53, v1
    """)
    for i in range(5):
        A(f"""
        v_mul_u32_u24 v5, 3277, v4
        v_lshrrev_b32 v5, 16, v5
        v_mul_u32_u24 v6, 20, v5
        v_sub_u32 v6, v4, v6
        v_mul_u32_u24 v5, 3840, v5
        v_lshl_add_u32 v{12+i}, v6, 4, v5
        """)
        if i < 4: A("v_add_u32 v4, 64, v4")
    A("s_waitcnt lgkmcnt(0)")
    stamp(A, 6)
    srd(A, 20, 4, 2048 * 1280)
    srd(A, 24, 6, 640 * 3840)
    def issue_x():
        A("s_add_u32 s56, s43, s48")
        for i in range(4):
            A(f"s_add_u32 m0, s56, {i*1024}")
            A(f"s_add_u32 s57, s41, {i*10240}")
            A(f"buffer_load_dwordx4 v{10+(i&1)}, s[20:23], s57 offen lds")
    def issue_w():
        A("s_add_u32 s56, s43, s49")
        for i in range(5):
            A(f"s_add_u32 m0, s56, {i*1024}")
            A("s_nop 0")
            A(f"buffer_load_dwordx4 v{12+i}, s[24:27], s42 offen lds")
    def advance():
        A(f"""
        s_add_u32 s41, s41, 128
        s_add_u32 s42, s42, {64*3840}
        s_add_u32 s47, s47, 1
        s_cmp_eq_u32 s47, 10
        s_cselect_b32 s47, 0, s47
        s_cselect_b32 s56, 1280, 0
        s_cselect_b32 s57, s26, 0
        s_sub_u32 s41, s41, s56
        s_sub_u32 s42, s42, s57
        s_add_u32 s43, s43, {STAGE}
        s_cmp_eq_u32 s43, {3*STAGE}
        s_cselect_b32 s43, 0, s43
        """)
    stamp(A, 7)
    issue_x(); issue_w(); advance()
    issue_x()
    stamp(A, 8)
    if STAMP: srd(A, 28, 10, WS_SIZE)
    A("s_waitcnt vmcnt(4)")
    A("s_barrier")
    stamp(A, 1)
    issue_w(); advance()
    issue_x(); issue_w(); advance()
    A("""
    s_mov_b32 s44, 1
    K1_LD_LOOP:
    s_waitcnt vmcnt(9)
    s_barrier
    """)
    issue_x(); issue_w(); advance()
    A("""
    s_add_u32 s44, s44, 1
    s_cmp_lt_u32 s44, 8
    s_cbranch_scc1 K1_LD_LOOP
    s_waitcnt vmcnt(9)
    s_barrier
    s_waitcnt vmcnt(0)
    s_barrier
    s_barrier
    """)
    stamp(A, 2)
    stamp(A, 3)
    stamp_rt(A, 5)
    stamp_store(A, 9, 36, 0, vt=20)
    A("""
    K1_END:
    s_endpgm
    K1_CONS:
    """)
    A.c("x frag addresses: row = 32*tile + (l&31); addr = row*128 + (((2ks+kh) ^ ((row>>1)&7))<<4)")
    A("""
    s_and_b32 s46, s36, 1
    s_lshr_b32 s48, s36, 1
    s_lshl_b32 s40, s46, 1
    s_add_u32 s40, s40, s48
    s_xor_b32 s41, s40, 1
    v_and_b32 v9, 31, v1
    v_lshrrev_b32 v10, 1, v9
    v_and_b32 v10, 7, v10
    v_xor_b32 v10, v10, v2
    s_lshl_b32 s42, s40, 12
    s_lshl_b32 s43, s41, 12
    v_lshlrev_b32 v11, 7, v9
    """)
    for ks in range(4):
        A(f"v_xor_b32 v12, {2*ks}, v10")
        A(f"v_lshl_add_u32 v12, v12, 4, v11")
        A(f"v_add_u32 v{XA+ks}, s42, v12")
        A(f"v_add_u32 v{XB2+ks}, s43, v12")
    A.c("W frag address pieces: r=(l>>2)&3, c=l&3, colhalf=(l>>4)&1, khalf=hh ; tile t = heads (t, t+4)")
    A(f"""
    v_lshrrev_b32 v12, 2, v1
    v_and_b32 v12, 3, v12
    v_lshl_add_u32 v12, v2, 3, v12
    v_and_b32 v13, 3, v1
    v_lshrrev_b32 v14, 4, v1
    v_and_b32 v14, 1, v14
    s_mov_b32 s45, 0
    v_mul_u32_u24 v12, 320, v12
    v_mul_u32_u24 v15, 160, v14
    v_add_u32 v12, v15, v12
    v_add_u32 v12, {XB}, v12
    v_mul_u32_u24 v10, 40, v13
    v_add_u32 v10, 32, v10
    v_add_u32 v{WA2}, v12, v10
    s_mul_i32 s42, s48, 80
    v_add_u32 v12, s42, v12
    """)
    for i in range(80): A(f"v_mov_b32 v{ACC0+i}, 0")
    A("s_waitcnt lgkmcnt(0)")
    stamp(A, 6)
    srd(A, 28, 10, WS_SIZE)
    A(f"""
    s_lshl_b32 s54, s37, 2
    s_and_b32 s53, s38, 3
    s_mul_i32 s55, s53, {8*VHEAD}
    s_add_u32 s56, s54, s41
    s_add_u32 s54, s54, s40
    s_mul_i32 s54, s54, 1280
    s_mul_i32 s56, s56, 1280
    s_add_u32 s56, s56, s55
    s_add_u32 s55, s55, s54
    s_mov_b32 s57, {VHEAD}
    s_mul_i32 s58, s48, {2*VHEAD}
    s_cmp_ge_u32 s38, 8
    s_cbranch_scc1 K1_V
    v_and_b32 v14, 1, v13
    v_lshl_add_u32 v12, v14, 4, v12
    v_lshrrev_b32 v14, 1, v13
    v_lshl_add_u32 v{WA}, v14, 3, v12
    s_cmp_lt_u32 s38, 4
    s_cselect_b32 s50, {f2u(QSCALE):#x}, 1.0
    s_mov_b32 s51, s50
    s_cselect_b32 s52, {WS_Q:#x}, {WS_K:#x}
    s_add_u32 s55, s55, s52
    s_add_u32 s56, s56, s52
    v_lshlrev_b32 v10, 4, v1
    v_lshlrev_b32 v11, 3, v9
    v_mad_u32_u24 v11, v2, s57, v11
    s_add_u32 s60, s55, s58
    s_add_u32 s61, s56, s58
    """)
    consumer_loop(A, "QK", "K1_QK_LOOP")
    A.c("QK epilogue: block [head][T]: main 1KB lane-linear, extras [tok][8B] at +1024")
    tmp = 20
    def nxt():
        nonlocal tmp
        d = tmp; tmp = 20 + (tmp - 20 + 4) % 28
        return d
    for rt in range(2):
        for tt in range(2):
            for hp in range(2):
                A(f"s_add_u32 s59, s{60+rt}, {(tt+4*hp)*VHEAD:#x}")
                r0 = acc(rt, tt) + 8 * hp
                d = nxt()
                for i in range(4):
                    A(f"v_pk_mul_f32 {vr(r0+2*i,2)}, {vr(r0+2*i,2)}, s[50:51]")
                for i in range(4):
                    A(f"v_cvt_pk_bf16_f32 v{d+i}, v{r0+2*i}, v{r0+2*i+1}")
                A(f"buffer_store_dwordx4 {vr(d,4)}, v10, s[28:31], s59 offen {STQ}")
    for a in range(4):
        A(f"s_add_u32 s59, s55, {2*a*VHEAD:#x}")
        d = nxt()
        r0 = ACCE + 4 * a
        for i in range(2):
            A(f"v_pk_mul_f32 {vr(r0+2*i,2)}, {vr(r0+2*i,2)}, s[50:51]")
        for i in range(2):
            A(f"v_cvt_pk_bf16_f32 v{d+i}, v{r0+2*i}, v{r0+2*i+1}")
        A(f"buffer_store_dwordx2 {vr(d,2)}, v11, s[28:31], s59 offen offset:1024 {STQ}")
    fin()
    A("K1_V:")
    A(f"""
    v_lshl_add_u32 v{WA}, v13, 3, v12
    s_add_u32 s55, s55, {WS_V:#x}
    s_add_u32 s56, s56, {WS_V:#x}
    s_add_u32 s60, s55, s58
    s_add_u32 s61, s56, s58
    s_mov_b32 s62, {4*VHEAD}
    v_and_b32 v10, 15, v1
    v_lshlrev_b32 v10, 4, v10
    v_lshl_add_u32 v10, v2, 8, v10
    v_mad_u32_u24 v10, v14, s62, v10
    v_lshlrev_b32 v11, 4, v13
    v_lshl_add_u32 v11, v2, 6, v11
    v_lshrrev_b32 v12, 2, v1
    v_and_b32 v12, 7, v12
    v_mad_u32_u24 v11, v12, s57, v11
    """)
    consumer_loop(A, "V", "K1_V_LOOP")
    A.c("V epilogue: block per (head,T,f) = 640B: [hh0 d0-15][hh1 d0-15][hh0 d16-19][hh1 d16-19]")
    for rt in range(2):
        for tt in range(2):
            A(f"s_add_u32 s59, s{60+rt}, {tt*VHEAD:#x}")
            for f in range(2):
                r0 = acc(rt, tt) + 8 * f
                d = nxt()
                for i in range(4):
                    A(f"v_cvt_pk_bf16_f32 v{d+i}, v{r0+2*i}, v{r0+2*i+1}")
                A(f"buffer_store_dwordx4 {vr(d,4)}, v10, s[28:31], s59 offen offset:{f*640} {STQ}")
    for f in range(2):
        r0 = ACCE + 8 * f
        d = nxt()
        for i in range(4):
            A(f"v_cvt_pk_bf16_f32 v{d+i}, v{r0+2*i}, v{r0+2*i+1}")
        A(f"buffer_store_dwordx4 {vr(d,4)}, v11, s[28:31], s55 offen offset:{512+f*640} {STQ}")
    fin()
    A("K1_AUX:")
    A(f"""
    s_sub_u32 s40, s40, 24
    s_lshl_b32 s40, s40, 3
    s_add_u32 s40, s40, s39
    v_lshlrev_b32 v3, 4, v1
    v_lshlrev_b32 v4, 1, v1
    v_and_b32 v5, 31, v1
    v_lshlrev_b32 v5, 4, v5
    s_mul_i32 s41, s40, 40960
    s_mul_i32 s42, s36, 5120
    s_add_u32 s41, s41, s42
    s_lshl_b32 s58, s40, 3
    s_add_u32 s58, s58, s36
    s_waitcnt lgkmcnt(0)
    """)
    stamp(A, 6)
    srd(A, 20, 4, 2048 * 1280)
    srd(A, 24, 18, 1280)
    srd(A, 28, 10, WS_SIZE)
    A("s_mov_b32 m0, s42")
    A("s_add_u32 s43, s41, 4096")
    for i in range(4): A(f"buffer_load_dwordx4 v3, s[20:23], s41 offen offset:{i*1024} lds")
    A("s_add_u32 m0, s42, 4096")
    A("s_nop 0")
    A("buffer_load_dwordx4 v3, s[20:23], s43 offen lds")
    A("s_mov_b32 m0, 40960")
    A("s_nop 0")
    A("buffer_load_dwordx4 v3, s[24:27], 0 offen lds")
    A("buffer_load_dwordx4 v3, s[24:27], 0 offen offset:1024 lds")
    A.c("weight re-layout: unit U = a*8+w + 512n (U < 1360): (ct pair, s); lane = column, 16 k rows")
    A("s_mov_b32 s35, 0x00020000")
    for n in range(3):
        A(f"""
        s_add_u32 s59, s58, {512*n}
        s_min_u32 s59, s59, 1359
        s_cmp_lt_u32 s59, 960
        s_cselect_b32 s32, s16, s8
        s_cselect_b32 s33, s17, s9
        s_mov_b32 s34, {640*1280}
        s_cmov_b32 s34, {1536*1280}
        s_cselect_b32 s60, 0, 960
        s_cselect_b32 s46, 96, 40
        s_mov_b32 s62, {(1<<32)//40+1:#x}
        s_cmov_b32 s62, {(1<<32)//96+1:#x}
        s_cselect_b32 s67, 16, 20
        s_cselect_b32 s50, 8, 4
        s_cselect_b32 s51, 4, 8
        s_cselect_b32 s52, 1000, 32
        s_mov_b32 s47, {WS_WO:#x}
        s_cmov_b32 s47, {WS_WD:#x}
        s_sub_u32 s60, s59, s60
        s_mul_hi_u32 s63, s60, s62
        s_mul_i32 s61, s63, s46
        s_sub_u32 s60, s60, s61
        s_lshl_b32 s48, s61, 1
        s_add_u32 s48, s48, s60
        s_lshl_b32 s48, s48, 10
        s_add_u32 s{64+n}, s48, s47
        s_lshl_b32 s46, s46, 10
        v_mad_u32_u24 v{6+n}, v2, s46, v5
        s_mul_i32 s61, s60, s67
        s_mul_i32 s53, s60, 80
        s_sub_u32 s53, s53, {32*80-16}
        s_cmp_ge_u32 s60, s52
        s_cselect_b32 s61, s53, s61
        s_cselect_b32 s50, 40, s50
        s_cselect_b32 s51, 20, s51
        s_mul_i32 s60, s61, 1280
        s_lshl_b32 s63, s63, 7
        s_add_u32 s60, s60, s63
        s_mul_i32 s51, s51, 1280
        s_mul_i32 s50, s50, 1280
        s_add_u32 s61, s60, s51
        s_add_u32 s62, s60, s50
        s_add_u32 s63, s62, s51
        """)
        for kh in range(2):
            for j in range(8):
                reg = 16 + 16 * n + 8 * kh + j // 2 + 4 * (j & 1)
                A(f"buffer_load_ushort v{reg}, v4, s[32:35], s{60 + 2 * kh + j // 4} offen offset:{(j % 4) * 1280}")
    A.c("gate: thread = (row = tid/16, part = tid%16), 40 elements each")
    A(f"""
    v_lshrrev_b32 v10, 4, v0
    v_and_b32 v11, 15, v0
    v_mul_u32_u24 v12, 80, v11
    v_mul_u32_u24 v13, 1280, v10
    v_add_u32 v13, v13, v12
    v_add_u32 v12, 40960, v12
    s_waitcnt vmcnt(48)
    s_barrier
    """)
    for i in range(5):
        A(f"ds_read_b128 {vr(64+4*i,4)}, v13 offset:{16*i}")
        A(f"ds_read_b128 {vr(84+4*i,4)}, v12 offset:{16*i}")
    A("v_mov_b32 v104, 0")
    A("v_mov_b32 v105, 0")
    A("s_waitcnt lgkmcnt(0)")
    for i in range(20): A(f"v_dot2_f32_bf16 v{104+(i&1)}, v{64+i}, v{84+i}, v{104+(i&1)}")
    A("s_nop 2")
    A("v_add_f32 v104, v104, v105")
    for sh in (8, 4, 2, 1):
        A("s_nop 1")
        A(f"v_add_f32_dpp v104, v104, v104 row_ror:{sh} row_mask:0xf bank_mask:0xf")
    A(f"""
    v_cvt_pk_bf16_f32 v104, v104, v104
    v_and_b32 v104, 0xffff0000, v104
    v_mul_f32 v104, {f2u(-LOG2E):#x}, v104
    v_exp_f32 v104, v104
    s_nop 0
    v_add_f32 v104, 1.0, v104
    v_rcp_f32 v104, v104
    s_nop 0
    v_cvt_pk_bf16_f32 v104, v104, v104
    v_and_b32 v104, 0xffff0000, v104
    v_sub_f32 v105, 1.0, v104
    v_cvt_pk_bf16_f32 v105, v105, v105
    v_and_b32 v105, 0xffff0000, v105
    s_lshl_b32 s54, s40, 7
    s_add_u32 s54, s54, {WS_G:#x}
    s_add_u32 s55, s54, 8192
    v_lshlrev_b32 v106, 2, v10
    v_cmp_ne_u32 vcc, 0, v11
    v_mov_b32 v107, 0x7f000000
    s_nop 0
    v_cndmask_b32 v106, v106, v107, vcc
    v_mov_b32 v108, 0x3f803f80
    v_mov_b32 v109, 0x3f803f80
    v_mov_b32 v110, 0x3f803f80
    v_mov_b32 v111, 0x3f803f80
    s_lshl_b32 s56, s36, 10
    s_add_u32 s56, s56, {WS_ONES:#x}
    s_cmp_eq_u32 s40, 0
    s_cselect_b32 s56, s56, 0x7f000000
    """)
    if TOUCH:
        A.c("touch the w_gate / w_up columns this die needs in the next launch: rows 80a'+10w.., 768B at 768*(x&3)")
        A(f"""
        s_mov_b32 s34, {640*3072}
        s_mov_b32 s32, s12
        s_mov_b32 s33, s13
        s_lshr_b32 s57, s40, 3
        s_mul_i32 s57, s57, 80
        s_mul_i32 s59, s36, 10
        s_add_u32 s57, s57, s59
        s_mul_i32 s57, s57, 3072
        s_and_b32 s59, s39, 3
        s_mul_i32 s59, s59, 768
        s_add_u32 s57, s57, s59
        """)
        for i in range(8):
            A(f"""
            v_add_u32 v112, {64*i}, v1
            v_min_u32 v112, 479, v112
            v_mul_u32_u24 v113, 1366, v112
            v_lshrrev_b32 v113, 16, v113
            v_mul_u32_u24 v114, 48, v113
            v_sub_u32 v114, v112, v114
            v_mul_u32_u24 v113, 3072, v113
            v_lshl_add_u32 v{116+i}, v114, 4, v113
            buffer_load_dwordx4 {vr(64+4*i,4)}, v{116+i}, s[32:35], s57 offen
            """)
        A("s_mov_b32 s32, s14")
        A("s_mov_b32 s33, s15")
        for i in range(8):
            A(f"buffer_load_dwordx4 {ar(4*i,4)}, v{116+i}, s[32:35], s57 offen")
    A(f"s_waitcnt vmcnt({16 if TOUCH else 0})")
    for n in range(3):
        for kh in range(2):
            b = 16 + 16 * n + 8 * kh
            for i in range(4):
                A(f"v_lshl_or_b32 v{b+i}, v{b+4+i}, 16, v{b+i}")
            A(f"buffer_store_dwordx4 {vr(b,4)}, v{6+n}, s[28:31], s{64+n} offen offset:{kh*512} {STS}")
    A("""
    buffer_store_dword v104, v106, s[28:31], s54 offen
    buffer_store_dword v105, v106, s[28:31], s55 offen
    buffer_store_dwordx4 v[108:111], v3, s[28:31], s56 offen
    """)
    stamp(A, 1); stamp(A, 2)
    fin(vt=124)
    A.L.append(f""".section .rodata,"a"
.p2align 6
.amdhsa_kernel {name}
  .amdhsa_next_free_vgpr {NV + NACC}
  .amdhsa_next_free_sgpr 96
  .amdhsa_accum_offset {NV}
  .amdhsa_group_segment_fixed_size 0
  .amdhsa_kernarg_size 88
  .amdhsa_user_sgpr_count 2
  .amdhsa_user_sgpr_kernarg_segment_ptr 1
  .amdhsa_system_sgpr_workgroup_id_x 1
.end_amdhsa_kernel""")
```

```python
from common import *
XB = 16384
UPOFF = 12288 + 32
SZ = XB + 2 * 12288 + 64
O_LDS = 3 * SZ
K2_LDS = O_LDS + 4 * 6144
def launch(): return f"; @launch kernel=k2_kernel grid=(256,1,1) block=(256,1,1) lds={K2_LDS}"
def ar(a, n=1): return f"a{a}" if n == 1 else f"a[{a}:{a+n-1}]"
QM = [16, 20, 24, 28]; QE = [32, 34, 36, 38]
S = [40, 56]; P = [72, 80]
def KB(j): return 88 + 4 * (j % 3)
def EB(j): return 100 + 2 * (j % 3)
def VB(j): return 108 + 8 * (j % 3)
VK, VE = 106, 107
DX = 132
DW = 136
XA = 142
WA = 146
GACC = 148
NARCH = 244
def GA(rt, t): return GACC + 16 * (3 * rt + t)
def OA(q): return 16 * q
def XF(buf, rt): return 64 + 4 * (2 * buf + rt)
def WF(buf, t): return 80 + 4 * (3 * buf + t)
TD = 104
NACC = 128
ST_ = 16
VT2 = 147
STH = os.environ.get('K2STH', 'sc1')
STO = os.environ.get('K2STO', 'sc1')
TOUCH = int(os.environ.get('K2TOUCH', '1'))
TPAT = {2: [0], 5: [1], 10: [2], 11: [3, 4, 5]}
SK, SV, SX, SW = 40, 44, 48, 52
PRE = 8
X = os.environ.get("K2X", "")

def qk_mfmas(u):
    j, q = divmod(u, 4)
    Sd = S[u % 2]
    return [f"v_mfma_f32_32x32x16_bf16 {vr(Sd,16)}, {vr(KB(j),4)}, {vr(QM[q],4)}, 0",
            f"v_mfma_f32_32x32x8_bf16 {vr(Sd,16)}, {vr(EB(j),2)}, {vr(QE[q],2)}, {vr(Sd,16)}"]
def pv_mfmas(u):
    j, q = divmod(u, 4)
    Pb = P[u % 2]
    if u < 0: return ["s_nop 0", "s_nop 0"]
    c0 = "0" if u < 4 else ar(OA(q),16)
    return [f"v_mfma_f32_32x32x16_bf16 {ar(OA(q),16)}, {vr(VB(j),4)}, {vr(Pb,4)}, {c0}",
            f"v_mfma_f32_32x32x16_bf16 {ar(OA(q),16)}, {vr(VB(j)+4,4)}, {vr(Pb+4,4)}, {ar(OA(q),16)}"]
def g_mfmas(u):
    if u < PRE: return []
    r = (u - PRE) % 12
    ks, t = divmod(r, 3)
    buf = ks & 1
    return [f"v_mfma_f32_32x32x16_bf16 {vr(GA(rt,t),16)}, {ar(WF(buf,t),4)}, {ar(XF(buf,rt),4)}, {vr(GA(rt,t),16)}" for rt in range(2)]
def g_reads(ks):
    buf = ks & 1
    R = [f"ds_read_b128 {ar(XF(buf,0),4)}, v{XA+ks}"]
    W = [f"ds_read_b64_tr_b16 {ar(WF(buf,t)+2*j2,2)}, v{WA} offset:{ks*3072 + j2*768 + t*32}" for t in range(3) for j2 in range(2)]
    return [R[0], f"ds_read_b128 {ar(XF(buf,1),4)}, v{XA+ks} offset:4096"] + W

def toff(j): return ((j - 2) % 3) * 1280
def ldK(j): return ("K", j, f"buffer_load_dwordx4 {vr(KB(j),4)}, v{VK}, {sr(SK,4)}, 0 offen offset:{toff(j)}")
def ldE(j): return ("E", j, f"buffer_load_dwordx2 {vr(EB(j),2)}, v{VE}, {sr(SK,4)}, 0 offen offset:{toff(j) + 1024}")
def ldV(j, f): return ("V%d" % f, j, f"buffer_load_dwordx4 {vr(VB(j) + 4 * f,4)}, v4, {sr(SV,4)}, 0 offen offset:{toff(j) + f * 640}")
def dmaX(c, i): return ("DX%d" % i, c, f"buffer_load_dwordx4 v{DX+i}, {sr(SX,4)}, 0 offen offset:{i*1024} lds")
def dmaW(c, i): return ("DW%d" % i, c, f"buffer_load_dwordx4 v{DW+i}, {sr(SW,4)}, 0 offen offset:{(i%4)*1024} lds")

def att_ops(u):
    j, q = divmod(u, 4)
    if q == 3: return [ldK(j + 3), ldE(j + 3)]
    if q == 1: return [ldV(j + 2, 0), ldV(j + 2, 1)]
    return []
def dma(c, i): return dmaX(c, i) if i < 4 else dmaW(c, i - 4)
PAT = {0: (3, 0), 1: (4, 1), 2: (1, 1), 3: (3, 2), 4: (2, 1), 5: (3, 1), 6: (2, 1), 7: (4, 1), 8: (2, 1), 9: (4, 1), 10: (2, 0), 11: (2, 0)}
def barrier_slot(u): return u >= PRE - 3 and (u - PRE + 3) % 12 == 0
def slot_ops(u):
    if 0 <= u < PRE: return [o for o in prefix_ops(u) if not ("nodma" in X and o[0][0] == "D") and not ("nods" in X and o[0] == "ds")]
    a = att_ops(u); ds = []; dm = []
    v = u - PRE + 3
    if v >= 0:
        c, r = divmod(v, 12)
        ks = r // 3
        lo = sum(PAT[x][0] for x in range(3 * ks, r))
        ds = [("ds", 0, t) for t in g_reads(ks)[lo:lo + PAT[r][0]]]
        lo = sum(PAT[x][1] for x in range(r))
        dm = [dma(c + 2, i) for i in range(lo, lo + PAT[r][1])]
    if "nodma" in X: dm = []
    if "nods" in X: ds = []
    t = []
    if TOUCH and v >= 0:
        t = [("T%d" % i, v // 12, f"buffer_load_dwordx4 {ar(TD+4*i,4)}, v{3 if i < 4 else VT2}, {sr(ST_,4)}, 0 offen offset:{(i%4)*1024}") for i in TPAT.get(v % 12, [])]
    return ds + a[:1] + dm + a[1:] + t
def posts_of(u):
    return [0, 2, 3, 4, 5] if u >= PRE else [0, 2, 3]
def placement(u):
    ops = slot_ops(u); posts = posts_of(u)
    real = [o for o in ops if o[0] != "sc"]
    n, m = len(real), len(posts)
    cnt = [n // m + (1 if i < n % m else 0) for i in range(m)] if n > m else [1 if i < n else 0 for i in range(m)]
    place = {p: [] for p in posts}
    i = 0; used = 0
    for o in ops:
        while i < m - 1 and used >= cnt[i]: i += 1; used = 0
        place[posts[i]].append(o)
        if o[0] != "sc": used += 1
    return place
def vm_wait(u, pro, shift):
    uu = u + shift
    j, q = divmod(uu + 1, 4)
    nd = []
    if q == 3: nd += [("K", j + 1), ("E", j + 1)]
    if q == 1: nd += [("V0", j), ("V1", j)]
    if barrier_slot(uu + 1):
        c = (uu + 1 - PRE + 3) // 12
        if "nodma" not in X: nd += [("DX%d" % i, c) for i in range(4)] + [("DW%d" % i, c) for i in range(6)]
    if not nd: return None
    seq = list(pro)
    for x in range(0, uu + 1):
        pl = placement(x)
        for p in posts_of(x):
            if x == uu and p == posts_of(x)[-1]: break
            for o in pl[p]:
                if o[0] not in ("ds", "sc"): seq.append((o[0], o[1]))
    last = max(seq.index(n) for n in nd)
    return len(seq) - 1 - last

G6 = [("e", 0, 3), ("e", 3, 7), ("e", 7, 9, "c", 0, 2), ("e", 9, 12, "c", 2, 3), ("e", 12, 14, "c", 3, 5), ("e", 14, 16, "c", 5, 8)]
G4 = [("e", 0, 4, "c", 0, 1), ("e", 4, 8, "c", 1, 3), ("e", 8, 12, "c", 3, 5), ("e", 12, 16, "c", 5, 8)]
def emit_slot(A, u, scal, pre_valu, wn):
    Sc, Pc = S[u % 2], P[u % 2]
    qk = qk_mfmas(u + 1); pv = pv_mfmas(u - 1); g = g_mfmas(u)
    mf = [qk[0], qk[1], pv[0]] + (g[:1]) + [pv[1]] + g[1:]
    gaps = G6 if g else G4
    place = placement(u); posts = posts_of(u)
    for l in pre_valu: A(l)
    for i, m in enumerate(mf):
        if not ("nog" in X and m in g): A(m)
        if i in place:
            if i == posts[-1] and wn is not None and "novm" not in X: A(f"s_waitcnt vmcnt({wn})")
            for l in scal.get(i, []): A(l)
            for o in place[i]:
                if u < PRE and m0_for(o): A(m0_for(o)); A("s_nop 0")
                A(o[2])
                if o[0] == "E" and o[1] >= 2 and (o[1] - 2) % 3 == 2:
                    A(f"v_add_u32 v{VK}, s74, v{VK}"); A(f"v_add_u32 v{VE}, s74, v{VE}")
                if o[0] == "V1" and o[1] >= 2 and (o[1] - 2) % 3 == 2: A("v_mad_i32_i24 v4, v5, s74, v4")
        gp = gaps[i]
        for e in range(gp[1], gp[2]): A(f"v_exp_f32 v{Sc+e}, v{Sc+e}")
        if len(gp) > 3:
            for c in range(gp[4], gp[5]): A(f"v_cvt_pk_bf16_f32 v{Pc+c}, v{Sc+2*c}, v{Sc+2*c+1}")

ADV = ["s_add_u32 s60, s60, 1", "s_cmp_eq_u32 s60, 10", "s_cselect_b32 s60, 0, s60", "s_cselect_b32 s64, s66, s67",
       "s_cselect_b32 s65, s68, s69", "s_cselect_b32 s70, -1, 0",
       f"s_add_u32 s{SX}, s{SX}, s64", f"s_addc_u32 s{SX+1}, s{SX+1}, s70",
       f"s_add_u32 s{SW}, s{SW}, s65", f"s_addc_u32 s{SW+1}, s{SW+1}, s70"]
KROT = int(os.environ.get("K2KROT", "5"))
KADV = ["s_add_u32 s76, s76, 1", "s_cmp_eq_u32 s76, 10", "s_cselect_b32 s76, 0, s76", "s_cselect_b32 s74, s78, s79",
        "s_cmp_ge_u32 s5, 9", "s_cselect_b32 s74, 0x400000, s74"]
def m0_for(op):
    return {"DX0": "s_add_u32 m0, s58, s61", "DW0": "s_add_u32 m0, s58, s62", "DW4": "s_add_u32 m0, s58, s63"}.get(op[0])


def prefix_ops(u):
    att = att_ops(u)
    K1 = ("K", 1, f"buffer_load_dwordx4 {vr(KB(1),4)}, v3, {sr(SK,4)}, s77 offen offset:1280")
    E1 = ("E", 1, f"buffer_load_dwordx2 {vr(EB(1),2)}, v7, {sr(SK,4)}, s77 offen offset:2304")
    V1 = [("V%d" % f, 1, f"buffer_load_dwordx4 {vr(VB(1)+4*f,4)}, v10, {sr(SV,4)}, 0 offen offset:{1280+f*640}") for f in range(2)]
    g = [("g", 0, "buffer_load_dword v14, v13, s[28:31], s23 offen"), ("g", 1, "buffer_load_dword v15, v13, s[28:31], s23 offen offset:128")]
    R = [("ds", 0, t) for t in g_reads(0)]
    D = lambda c, lo, hi: [dma(c, i) for i in range(lo, hi)]
    T = {0: [K1, E1] + D(0, 0, 4),
         1: V1 + D(0, 4, 7) + att,
         2: [ldK(2), ldE(2)] + D(0, 7, 10),
         3: att + [("sc", 0, l) for l in ADV + [f"s_mov_b32 s58, {SZ}"]] + D(1, 0, 3),
         4: D(1, 3, 7) + g,
         5: R[0:3] + att + D(1, 7, 8),
         6: R[3:7] + D(1, 8, 10),
         7: R[7:8] + att + [("sc", 0, l) for l in ADV + [f"s_mov_b32 s58, {2*SZ}"]] + D(2, 0, 2)}
    return T[u]

def gen_k2(A, **opt):
    name = "k2_kernel"
    kernel_header(A, name)
    stamp(A, 0, 80); stamp_rt(A, 4, 80)
    A(f"""
    s_cmp_ge_u32 s2, 256
    s_cbranch_scc1 K2_END
    s_load_dwordx2 s[10:11], s[0:1], 80
    s_load_dwordx2 s[4:5], s[0:1], 0
    s_load_dwordx4 s[12:15], s[0:1], 32
    v_lshrrev_b32 v1, 6, v0
    s_and_b32 s6, s2, 7
    v_readfirstlane_b32 s36, v1
    v_and_b32 v1, 63, v0
    s_lshr_b32 s7, s2, 3
    s_and_b32 s37, s6, 3
    s_lshl_b32 s37, s37, 3
    s_lshr_b32 s9, s7, 2
    s_add_u32 s37, s37, s9
    s_lshr_b32 s38, s6, 2
    s_lshl_b32 s38, s38, 2
    s_and_b32 s76, s7, 3
    s_add_u32 s38, s38, s76
    s_lshl_b32 s38, s38, 3
    s_and_b32 s8, s36, 1
    s_lshl_b32 s9, s8, 2
    s_add_u32 s38, s38, s9
    s_and_b32 s9, s36, 2
    s_add_u32 s33, s38, s9
    s_xor_b32 s9, s9, 2
    s_add_u32 s34, s38, s9
    s_lshr_b32 s35, s36, 1
    v_lshrrev_b32 v2, 5, v1
    v_lshlrev_b32 v3, 4, v1
    v_and_b32 v6, 31, v1
    v_lshlrev_b32 v7, 3, v6
    s_mul_i32 s26, s37, {VHEAD}
    s_mul_i32 s17, s35, 40960
    s_add_u32 s19, s26, s17
    s_add_u32 s19, s19, {WS_K:#x}
    s_mul_i32 s20, s33, 1280
    s_add_u32 s20, s20, s26
    s_mul_i32 s21, s34, 1280
    s_add_u32 s21, s21, s26
    s_mov_b32 s77, 38400
    s_mul_i32 s76, s76, {KROT}
    s_lshr_b32 s76, s76, 1
    """)
    A.c("V lane offsets (from the ones block): d<16: hh*256+d*16 ; d<20: 512+hh*64+(d-16)*16 ; d==20: ones ; else OOB")
    A(f"""
    v_lshlrev_b32 v11, 4, v6
    v_lshl_add_u32 v4, v2, 8, v11
    v_lshl_add_u32 v5, v2, 6, v11
    v_add_u32 v5, 256, v5
    v_cmp_gt_u32 vcc, 16, v6
    s_add_u32 s16, s26, 8192
    s_add_u32 s18, s16, s17
    v_cndmask_b32 v4, v5, v4, vcc
    v_add_u32 v9, s16, v4
    v_add_u32 v4, s17, v9
    v_mov_b32 v5, 0x7f000000
    v_cmp_gt_u32 vcc, 20, v6
    s_add_u32 s18, s18, 40960
    s_mul_i32 s74, s76, 3840
    v_cndmask_b32 v4, v5, v4, vcc
    v_cndmask_b32 v9, v5, v9, vcc
    v_cndmask_b32 v5, 0, 1, vcc
    v_cmp_eq_u32 vcc, 20, v6
    v_add_u32 v{VK}, s74, v3
    v_add_u32 v{VE}, s74, v7
    v_cndmask_b32 v4, v4, 0, vcc
    v_cndmask_b32 v9, v9, 0, vcc
    v_mad_u32_u24 v10, v5, s77, v4
    v_mad_u32_u24 v4, v5, s74, v4
    s_waitcnt lgkmcnt(0)
    """)
    assert WS_Q == 0
    stamp(A, 8, 80)
    srd(A, 28, 10, WS_SIZE)
    A(f"""
    buffer_load_dwordx4 v[16:19], v3, s[28:31], s20 offen
    buffer_load_dwordx2 v[40:41], v7, s[28:31], s20 offen offset:1024
    """)
    srd_off(A, SK, 10, "s19", 40960)
    A(f"""
    buffer_load_dwordx4 {vr(KB(0),4)}, v3, {sr(SK,4)}, s77 offen
    buffer_load_dwordx2 {vr(EB(0),2)}, v7, {sr(SK,4)}, s77 offen offset:1024
    buffer_load_dwordx4 v[20:23], v3, s[28:31], s20 offen offset:1280
    buffer_load_dwordx2 v[42:43], v7, s[28:31], s20 offen offset:2304
    buffer_load_dwordx4 v[24:27], v3, s[28:31], s21 offen
    buffer_load_dwordx2 v[44:45], v7, s[28:31], s21 offen offset:1024
    buffer_load_dwordx4 v[28:31], v3, s[28:31], s21 offen offset:1280
    buffer_load_dwordx2 v[46:47], v7, s[28:31], s21 offen offset:2304
    """)
    srd_off(A, SV, 10, f"{WS_ONES:#x}", "s18")
    pro = []
    def pl(kind, idx, text): pro.append((kind, idx)); A(text)
    for f in range(2): pl("V%d" % f, 0, f"buffer_load_dwordx4 {vr(VB(0)+4*f,4)}, v10, {sr(SV,4)}, 0 offen offset:{f*640}")
    A.c("GEGLU tile: rb = 8*(x>>2) + (m&7), fg = 4*(x&3) + (m>>3); chunk rotation s60")
    A(f"""
    s_lshr_b32 s24, s6, 2
    s_lshl_b32 s24, s24, 3
    s_and_b32 s9, s7, 7
    s_add_u32 s24, s24, s9
    s_and_b32 s25, s6, 3
    s_lshl_b32 s25, s25, 2
    s_lshr_b32 s16, s7, 3
    s_add_u32 s25, s25, s16
    s_mul_i32 s9, s9, 5
    s_mul_i32 s16, s16, 10
    s_add_u32 s9, s9, s16
    s_lshr_b32 s9, s9, 2
    s_cmp_ge_u32 s9, 10
    s_cselect_b32 s16, 10, 0
    s_sub_u32 s60, s9, s16
    s_lshl_b32 s23, s33, 7
    s_add_u32 s23, s23, {WS_G:#x}
    v_lshlrev_b32 v13, 2, v6
    s_mul_i32 s16, s24, {128*1280}
    s_lshl_b32 s9, s60, 7
    s_add_u32 s16, s16, s9
    s_mul_i32 s17, s25, 192
    s_mul_i32 s9, s60, {64*3072}
    s_add_u32 s17, s17, s9
    s_lshl_b32 s61, s36, 12
    s_mul_i32 s62, s35, {UPOFF}
    s_mul_i32 s9, s8, 6144
    s_add_u32 s62, s62, s9
    s_add_u32 s62, s62, {XB}
    s_add_u32 s63, s62, 4096
    s_cmp_eq_u32 s35, 0
    s_cselect_b32 s12, s12, s14
    s_cselect_b32 s13, s13, s15
    s_mov_b32 s66, {(-9*128) & 0xffffffff:#x}
    s_movk_i32 s67, 128
    s_mov_b32 s68, {(-9*64*3072) & 0xffffffff:#x}
    s_mov_b32 s69, {64*3072}
    s_mov_b32 s58, 0
    s_mov_b32 s57, 0
    s_mov_b32 s71, {(-2*SZ) & 0xffffffff:#x}
    s_mov_b32 s72, {SZ}
    s_mov_b32 s78, {(-9*3840) & 0xffffffff:#x}
    s_movk_i32 s79, 3840
    """)
    if TOUCH:
        A.c("touch window for the last launch's weights: wave index in die n = 4m+w; n<80: wd, else wo; disabled until the last two iterations")
        A(f"""
        s_lshl_b32 s9, s7, 2
        s_add_u32 s9, s9, s36
        s_and_b32 s14, s6, 1
        s_mul_i32 s15, s14, {960*1024}
        s_add_u32 s15, s15, {WS_WD:#x}
        s_mul_i32 s14, s14, {400*1024}
        s_add_u32 s14, s14, {WS_WO - 80*12288:#x}
        s_cmp_lt_u32 s9, 80
        s_cselect_b32 s14, s15, s14
        s_min_u32 s9, s9, 113
        s_mul_i32 s9, s9, 12288
        s_add_u32 s14, s14, s9
        s_sub_u32 s14, s14, {8*6144}
        v_add_u32 v{VT2}, 4096, v3
        """)
    for l in KADV[:4]: A(l)
    srd_off(A, SX, 4, "s16", 2048 * 1280)
    srd_off(A, SW, 12, "s17", 640 * 3072)
    if TOUCH: srd_off(A, ST_, 10, "s14", 0)
    A.c("DMA source offsets: x rows 32w+8i+(l>>3), piece (l&7)^((row>>1)&7) ; W pieces P=(6*(w&1)+i)*64+l -> k=P/12, c=P%12")
    A(f"""
    v_lshrrev_b32 v8, 3, v1
    s_lshl_b32 s9, s36, 5
    v_add_u32 v8, s9, v8
    v_mul_u32_u24 v8, 1280, v8
    v_and_b32 v11, 7, v1
    v_lshrrev_b32 v12, 4, v1
    v_xor_b32 v11, v11, v12
    v_lshl_add_u32 v{DX}, v11, 4, v8
    v_xor_b32 v8, 64, v{DX}
    v_add_u32 v{DX+1}, {10240-1024}, v8
    v_add_u32 v{DX+2}, {2*(10240-1024)}, v{DX}
    v_add_u32 v{DX+3}, {3*(10240-1024)}, v8
    s_mul_i32 s9, s8, 384
    v_add_u32 v8, s9, v1
    """)
    for i in range(6):
        A(f"""
        v_mul_u32_u24 v11, 5462, v8
        v_lshrrev_b32 v11, 16, v11
        v_mul_u32_u24 v12, 12, v11
        v_sub_u32 v12, v8, v12
        v_mul_u32_u24 v11, 3072, v11
        v_lshl_add_u32 v{DW+i}, v12, 4, v11
        """)
        if i % 4: A(f"v_subrev_u32 v{DW+i}, {(i%4)*1024}, v{DW+i}")
        if i < 5: A("v_add_u32 v8, 64, v8")
    A.c("LDS read addresses; tail addresses")
    A(f"""
    v_lshrrev_b32 v8, 1, v6
    v_and_b32 v8, 7, v8
    v_xor_b32 v8, v8, v2
    s_lshl_b32 s9, s8, 13
    v_lshlrev_b32 v11, 7, v6
    v_add_u32 v11, s9, v11
    """)
    for ks in range(4):
        A(f"v_xor_b32 v12, {2*ks}, v8")
        A(f"v_lshl_add_u32 v{XA+ks}, v12, 4, v11")
    A(f"""
    v_lshrrev_b32 v12, 2, v1
    v_and_b32 v12, 3, v12
    v_lshl_add_u32 v12, v2, 3, v12
    v_mul_u32_u24 v12, 192, v12
    v_lshrrev_b32 v8, 4, v1
    v_and_b32 v8, 1, v8
    v_mul_u32_u24 v8, {UPOFF}, v8
    v_add_u32 v12, v12, v8
    v_and_b32 v8, 1, v1
    v_lshl_add_u32 v12, v8, 4, v12
    v_and_b32 v8, 2, v1
    v_lshl_add_u32 v12, v8, 2, v12
    s_mul_i32 s9, s35, 96
    s_add_u32 s9, s9, {XB}
    v_add_u32 v{WA}, s9, v12
    s_mul_i32 s9, s36, 6144
    s_add_u32 s9, s9, {O_LDS}
    v_add_u32 v11, s9, v3
    s_xor_b32 s9, s36, 2
    s_mul_i32 s9, s9, 6144
    s_add_u32 s9, s9, {O_LDS}
    v_add_u32 v12, s9, v3
    """)
    for i in range(96): A(f"v_mov_b32 v{GACC+i}, 0")
    A("v_cmp_eq_u32 vcc, 0, v2")
    A(f"s_waitcnt vmcnt({len(pro)})")
    for q in range(4):
        for i in range(2):
            A(f"v_cndmask_b32 v{QE[q]+i}, 0, v{40+2*q+i}, vcc")
    A("s_nop 1")
    for m in qk_mfmas(0): A(m)
    A("s_mov_b32 s5, 0")
    A("s_nop 7")
    A("s_nop 7")
    stamp(A, 1, 80)
    pro_full = [("K", 0), ("E", 0)] + pro

    def build(u0, u1, in_loop):
        pos = [(u, p) for u in range(u0, u1) for p in posts_of(u)]
        scal = {x: [] for x in pos}
        pre = {u: [] for u in range(u0, u1)}
        waits = {u: vm_wait(u, pro_full, 24 if in_loop else 0) for u in range(u0, u1)}
        busy = {(u, posts_of(u)[-1]) for u in range(u0, u1) if waits[u] is not None}
        def put(x, ins):
            scal[x].append(ins); busy.add(x)
        for u in range(u0, u1):
            if barrier_slot(u):
                put((u, 0), "s_waitcnt lgkmcnt(0)"); put((u, 0), "s_barrier" if "nobar" not in X else "s_nop 0")
                if u - PRE + 3 > 0:
                    pre[u] = [f"v_add_u32 v{XA+i}, s56, v{XA+i}" for i in range(4)] + [f"v_add_u32 v{WA}, s56, v{WA}"]
            elif u >= PRE and (u - PRE) % 3 == 0:
                put((u, 0), "s_waitcnt lgkmcnt(0)")
        if in_loop:
            for k, x in enumerate(pos):
                for o in placement(x[0])[x[1]]:
                    m = m0_for(o)
                    if m:
                        y = pos[k - 1]
                        assert k > 0 and not any(z[0][0] == "D" for z in placement(y[0])[y[1]])
                        put(y, m)
        def chain(ins, first, last):
            free = [x for x in pos if first <= x <= last and x not in busy]
            if len(free) < len(ins):
                free = sorted(free + [last] * (len(ins) - len(free)))
            for x, i in zip(free, ins): put(x, i)
        return pos, scal, pre, waits, chain
    pos, scal, pre, waits, chain = build(0, PRE, False)
    for u in range(PRE):
        emit_slot(A, u, {p: scal[(u, p)] for p in posts_of(u)}, pre[u], waits[u])
    if STAMP:
        stamp(A, 9, 80); A("s_waitcnt lgkmcnt(0)")
    A(".p2align 6")
    A("K2_LOOP:")
    pos, scal, pre, waits, chain = build(PRE, PRE + 12, True)
    B = PRE + 9
    chain(ADV, (PRE + 6, 5), (PRE + 8, 4))
    chain(["s_cmp_ge_u32 s5, 8", f"s_cselect_b32 s{SX+2}, 0, s{SX+2}", f"s_cselect_b32 s{SW+2}, 0, s{SW+2}"] +
          ([f"s_cselect_b32 s{ST_+2}, 6144, 0", f"s_add_u32 s{ST_}, s{ST_}, 6144", f"s_addc_u32 s{ST_+1}, s{ST_+1}, 0"] if TOUCH else []), (B, 3), (B + 1, 3))
    chain(["s_add_u32 s5, s5, 1"], (PRE, 2), (PRE, 2))
    chain(["s_mov_b32 s73, s57", f"s_add_u32 s57, s57, {SZ}", f"s_cmp_eq_u32 s57, {3*SZ}", "s_cselect_b32 s57, 0, s57", "s_cselect_b32 s56, s71, s72"] + KADV,
          (PRE + 2, 0), (PRE + 5, 2))
    scal[(B, 2)].insert(0, "s_mov_b32 s58, s73")
    chain(["s_cmp_lt_u32 s5, 10"], (PRE + 11, 3), (PRE + 11, 5))
    for u in range(PRE, PRE + 12):
        emit_slot(A, u, {p: scal[(u, p)] for p in posts_of(u)}, pre[u], waits[u])
    A("s_cbranch_scc1 K2_LOOP")
    for m in pv_mfmas(PRE + 11): A(m)
    stamp(A, 2, 80)
    tail(A)
    A.L.append(f""".section .rodata,"a"
.p2align 6
.amdhsa_kernel {name}
  .amdhsa_next_free_vgpr {NARCH + NACC}
  .amdhsa_next_free_sgpr 102
  .amdhsa_accum_offset {NARCH}
  .amdhsa_group_segment_fixed_size 0
  .amdhsa_kernarg_size 88
  .amdhsa_user_sgpr_count 2
  .amdhsa_user_sgpr_kernarg_segment_ptr 1
  .amdhsa_system_sgpr_workgroup_id_x 1
.end_amdhsa_kernel""")

def tail(A):
    O = [88, 104]; XR = [120, 132]
    A.c("GEGLU epilogue")
    C0 = -2.0 * LOG2E * math.sqrt(2.0 / math.pi)
    C1 = C0 * 0.044715
    A(f"""
    s_mov_b32 s12, {f2u(C1):#x}
    s_mov_b32 s13, {f2u(C1):#x}
    v_mov_b32 v16, {f2u(C0):#x}
    v_mov_b32 v17, {f2u(C0):#x}
    s_lshl_b32 s14, s24, 2
    s_lshl_b32 s15, s8, 1
    s_add_u32 s14, s14, s15
    s_mul_i32 s14, s14, 96
    s_mul_i32 s15, s25, 6
    s_add_u32 s14, s14, s15
    s_mul_i32 s15, s35, 3
    s_add_u32 s14, s14, s15
    s_lshl_b32 s14, s14, 10
    s_add_u32 s14, s14, {WS_H:#x}
    s_add_u32 s15, s14, {96*1024}
    """)
    first = True
    for rt in range(2):
        for t in range(3):
            g0 = GA(rt, t); u0 = g0 + 8
            z = 24; d = 40 + 4 * (3 * rt + t)
            for p in range(4): A(f"v_pk_mul_f32 {vr(z+2*p,2)}, {vr(g0+2*p,2)}, {vr(g0+2*p,2)}")
            for p in range(4): A(f"v_pk_fma_f32 {vr(z+2*p,2)}, {vr(z+2*p,2)}, s[12:13], v[16:17]")
            for p in range(4): A(f"v_pk_mul_f32 {vr(z+2*p,2)}, {vr(z+2*p,2)}, {vr(g0+2*p,2)}")
            for i in range(8): A(f"v_exp_f32 v{z+i}, v{z+i}")
            for p in range(4): A(f"v_pk_mul_f32 {vr(u0+2*p,2)}, {vr(u0+2*p,2)}, {vr(g0+2*p,2)}")
            for p in range(4): A(f"v_pk_add_f32 {vr(z+2*p,2)}, {vr(z+2*p,2)}, 1.0 op_sel_hi:[1,0]")
            for i in range(8): A(f"v_rcp_f32 v{z+i}, v{z+i}")
            if first:
                A.c("publish the partner's O tiles while the VALU works")
                for q in range(2):
                    for a in range(3):
                        A(f"ds_write_b128 v11, {ar(OA(2+q)+4*a,4)} offset:{(3*q+a)*1024}")
                first = False
            else:
                A("s_nop 0")
            for p in range(4): A(f"v_pk_mul_f32 {vr(u0+2*p,2)}, {vr(u0+2*p,2)}, {vr(z+2*p,2)}")
            for p in range(4): A(f"v_cvt_pk_bf16_f32 v{d+p}, v{u0+2*p}, v{u0+2*p+1}")
            A(f"buffer_store_dwordx4 {vr(d,4)}, v3, s[28:31], s{14+rt} offen offset:{t*1024} {STH}")
            if rt == 0 and t == 2:
                A("s_waitcnt lgkmcnt(0)")
                A("s_barrier")
                A("s_waitcnt vmcnt(3)")
                for q in range(2):
                    for a in range(3):
                        A(f"ds_read_b128 {vr(XR[q]+4*a,4)}, v12 offset:{(3*q+a)*1024}")
    stamp(A, 7, 80)
    for q in range(2):
        for i in range(12): A(f"v_accvgpr_read_b32 v{O[q]+i}, a{OA(q)+i}")
    A("s_waitcnt lgkmcnt(0)")
    for q in range(2):
        for i in range(6): A(f"v_pk_add_f32 {vr(O[q]+2*i,2)}, {vr(O[q]+2*i,2)}, {vr(XR[q]+2*i,2)}")
    A("s_mov_b32 s5, 0")
    A("K2_FIN:")
    A.c("finalize: l = row 20 (reg 8 of upper lanes)")
    T = 32
    for q in range(2):
        A(f"v_mov_b32 v{T+2*q}, v{O[q]+8}")
        A(f"v_mov_b32 v{T+2*q+1}, v{O[q]+8}")
    A("s_nop 1")
    for q in range(2): A(f"v_permlane32_swap_b32 v{T+2*q}, v{T+2*q+1}")
    A("s_nop 1")
    for q in range(2):
        A(f"v_rcp_f32 v{T+2*q}, v{T+2*q+1}")
    A("v_mov_b32 v38, 0")
    for q in range(2):
        A(f"v_mul_f32 v{T+2*q}, v{T+2*q}, v{14+q}")
    for q in range(2):
        for i in range(6): A(f"v_pk_mul_f32 {vr(O[q]+2*i,2)}, {vr(O[q]+2*i,2)}, {vr(T+2*q,2)} op_sel_hi:[1,0]")
    A.c("safety check (fast path only): 2^-30 <= l <= 2^60 and all outputs finite, else redo with the true row max")
    A("v_mov_b32 v39, 0")
    for q in range(2):
        for i in range(6): A(f"v_pk_fma_f32 v[38:39], {vr(O[q]+2*i,2)}, 0, v[38:39] op_sel_hi:[1,0,1]")
    A(f"""
    v_add_f32 v38, v38, v39
    v_min_f32 v36, v33, v35
    v_max_f32 v37, v33, v35
    s_mov_b32 s16, {f2u(2.0**-30):#x}
    s_mov_b32 s17, {f2u(2.0**60):#x}
    v_cmp_le_f32 s[12:13], s16, v36
    v_cmp_ge_f32 s[14:15], s17, v37
    v_cmp_o_f32 s[16:17], v33, v35
    v_cmp_eq_f32 vcc, 0, v38
    s_and_b64 s[12:13], s[12:13], s[14:15]
    s_and_b64 s[12:13], s[12:13], s[16:17]
    s_and_b64 s[12:13], s[12:13], vcc
    s_cmp_eq_u64 s[12:13], -1
    s_cselect_b32 s12, 1, 0
    s_or_b32 s12, s12, s5
    s_cmp_eq_u32 s12, 0
    s_cbranch_scc1 K2_SLOW
    """)
    A.c("stores: O' block [T][head]: main 1KB, extras [tok][8B]")
    for q in range(2):
        for i in range(4): A(f"v_cvt_pk_bf16_f32 v{64+8*q+i}, v{O[q]+2*i}, v{O[q]+2*i+1}")
        for i in range(2): A(f"v_cvt_pk_bf16_f32 v{68+8*q+i}, v{O[q]+8+2*i}, v{O[q]+8+2*i+1}")
    A(f"""
    s_mul_i32 s12, s33, 40960
    s_mul_i32 s13, s37, 1280
    s_add_u32 s12, s12, s13
    s_add_u32 s12, s12, {WS_O:#x}
    s_add_u32 s13, s12, 40960
    v_mul_u32_u24 v80, 0x7f0000, v2
    v_lshl_add_u32 v80, v80, 8, v7
    buffer_store_dwordx4 v[64:67], v3, s[28:31], s12 offen {STO}
    buffer_store_dwordx2 v[68:69], v80, s[28:31], s12 offen offset:1024 {STO}
    buffer_store_dwordx4 v[72:75], v3, s[28:31], s13 offen {STO}
    buffer_store_dwordx2 v[76:77], v80, s[28:31], s13 offen offset:1024 {STO}
    """)
    stamp(A, 6, 80)
    if STAMP: A("s_waitcnt vmcnt(0)")
    stamp(A, 3, 80); stamp_rt(A, 5, 80)
    stamp_store(A, 10, 36, 1, vt=82, base=80)
    A("K2_END:")
    A("s_endpgm")
    A("K2_SLOW:")
    K, E, V = 120, 124, 128
    SA, SB = 40, 56
    QMs = [16, 20]; QEs = [24, 26]
    A(f"""
    s_mov_b32 s5, 1
    s_waitcnt vmcnt(0)
    s_mov_b32 s{SV+2}, {8192 + 32*VHEAD}
    buffer_load_dwordx4 v[16:19], v3, s[28:31], s20 offen
    buffer_load_dwordx4 v[20:23], v3, s[28:31], s20 offen offset:1280
    buffer_load_dwordx2 v[24:25], v7, s[28:31], s20 offen offset:1024
    buffer_load_dwordx2 v[26:27], v7, s[28:31], s20 offen offset:2304
    v_mov_b32 v28, 0xff800000
    v_mov_b32 v29, 0xff800000
    v_mul_u32_u24 v30, 1280, v5
    v_cmp_eq_u32 vcc, 0, v2
    s_waitcnt vmcnt(0)
    """)
    for i in range(4): A(f"v_cndmask_b32 v{24+i}, 0, v{24+i}, vcc")
    def slow_qk():
        A(f"""
        s_mul_i32 s12, s4, 1280
        s_add_u32 s12, s12, s26
        s_add_u32 s12, s12, {WS_K:#x}
        buffer_load_dwordx4 {vr(K,4)}, v3, s[28:31], s12 offen
        buffer_load_dwordx2 {vr(E,2)}, v7, s[28:31], s12 offen offset:1024
        """)
    def slow_mf():
        for q, Sx in ((0, SA), (1, SB)):
            A(f"v_mfma_f32_32x32x16_bf16 {vr(Sx,16)}, {vr(K,4)}, {vr(QMs[q],4)}, 0")
            A(f"v_mfma_f32_32x32x8_bf16 {vr(Sx,16)}, {vr(E,2)}, {vr(QEs[q],2)}, {vr(Sx,16)}")
        A("s_nop 15")
    A("s_mov_b32 s4, 0")
    A("K2_SLOW1:")
    slow_qk()
    A("s_waitcnt vmcnt(0)")
    slow_mf()
    for q, Sx in ((0, SA), (1, SB)):
        for i in range(8): A(f"v_max3_f32 v{28+q}, v{Sx+2*i}, v{Sx+2*i+1}, v{28+q}")
    A("""
    s_add_u32 s4, s4, 1
    s_cmp_lt_u32 s4, 64
    s_cbranch_scc1 K2_SLOW1
    v_mov_b32 v32, v28
    v_mov_b32 v33, v28
    v_mov_b32 v34, v29
    v_mov_b32 v35, v29
    s_nop 1
    v_permlane32_swap_b32 v32, v33
    v_permlane32_swap_b32 v34, v35
    s_nop 1
    v_max_f32 v28, v32, v33
    v_max_f32 v29, v34, v35
    s_mov_b32 s4, 0
    """)
    for i in range(32): A(f"v_mov_b32 v{O[0]+i}, 0")
    A("K2_SLOW2:")
    slow_qk()
    A(f"buffer_load_dwordx4 {vr(V,4)}, v9, {sr(SV,4)}, 0 offen")
    A(f"buffer_load_dwordx4 {vr(V+4,4)}, v9, {sr(SV,4)}, 0 offen offset:640")
    A("v_add_u32 v9, v9, v30")
    A("s_waitcnt vmcnt(0)")
    slow_mf()
    for q, Sx in ((0, SA), (1, SB)):
        for i in range(16): A(f"v_sub_f32 v{Sx+i}, v{Sx+i}, v{28+q}")
        for i in range(16): A(f"v_exp_f32 v{Sx+i}, v{Sx+i}")
        A("s_nop 0")
        for i in range(8): A(f"v_cvt_pk_bf16_f32 v{Sx+i}, v{Sx+2*i}, v{Sx+2*i+1}")
        A("s_nop 1")
        A(f"v_mfma_f32_32x32x16_bf16 {vr(O[q],16)}, {vr(V,4)}, {vr(Sx,4)}, {vr(O[q],16)}")
        A(f"v_mfma_f32_32x32x16_bf16 {vr(O[q],16)}, {vr(V+4,4)}, {vr(Sx+4,4)}, {vr(O[q],16)}")
    A("""
    s_add_u32 s4, s4, 1
    s_cmp_lt_u32 s4, 64
    s_cbranch_scc1 K2_SLOW2
    s_nop 15
    s_branch K2_FIN
    """)
```

```python
from common import *
RS = 336
WSZ = 64 * RS
K3_LDS = 4 * WSZ
def launch(): return f"; @launch kernel=k3_kernel grid=(256,1,1) block=(256,1,1) lds={K3_LDS}"
def ar(a, n=1): return f"a{a}" if n == 1 else f"a[{a}:{a+n-1}]"
D = int(os.environ.get("K3D", "4"))
RT = int(os.environ.get("K3RT", "0")); RC = int(os.environ.get("K3RC", "0"))
MAP = int(os.environ.get("K3MAP", "0"))
ACC = 40
def acc(i, j): return ACC + 4 * (5 * i + j)
NARCH = 120
def ring(p): return 36 * (p % D)
VA = 8
VA2 = 17
VX = 26
OMG = 30
NS = 17
STX = os.environ.get('K3ST', '')

def gen_k3(A, **opt):
    name = "k3_kernel"
    kernel_header(A, name)
    stamp(A, 0); stamp_rt(A, 4)
    A(f"""
    s_cmp_ge_u32 s2, 256
    s_cbranch_scc1 K3_END
    s_load_dwordx2 s[10:11], s[0:1], 80
    s_load_dwordx2 s[8:9], s[0:1], 64
    v_lshrrev_b32 v1, 6, v0
    s_and_b32 s39, s2, 7
    v_readfirstlane_b32 s36, v1
    v_and_b32 v1, 63, v0
    s_lshr_b32 s40, s2, 3
    """)
    if MAP == 0:
        A("""
        s_lshr_b32 s37, s39, 1
        s_lshl_b32 s37, s37, 3
        s_and_b32 s41, s40, 7
        s_add_u32 s37, s37, s41
        s_and_b32 s38, s39, 1
        s_lshl_b32 s38, s38, 2
        s_lshr_b32 s42, s40, 3
        s_add_u32 s38, s38, s42
        """)
    else:
        A("""
        s_lshr_b32 s37, s39, 2
        s_lshl_b32 s37, s37, 4
        s_and_b32 s41, s40, 15
        s_add_u32 s37, s37, s41
        s_and_b32 s38, s39, 3
        s_lshl_b32 s38, s38, 1
        s_lshr_b32 s42, s40, 4
        s_add_u32 s38, s38, s42
        """)
    A(f"""
    s_mul_i32 s41, s41, {RT}
    s_mul_i32 s42, s42, {RC}
    s_add_u32 s41, s41, s42
    s_lshr_b32 s41, s41, 1
    s_mul_i32 s42, s41, 5462
    s_lshr_b32 s42, s42, 16
    s_mul_i32 s42, s42, 12
    s_sub_u32 s44, s41, s42
    s_lshl_b32 s44, s44, 11
    v_lshrrev_b32 v2, 4, v1
    v_and_b32 v3, 15, v1
    v_lshlrev_b32 v4, 4, v3
    v_lshl_add_u32 v5, v2, 9, v4
    s_mul_i32 s45, s36, {24*1024}
    s_mul_i32 s46, s37, {2*96*1024}
    s_add_u32 s46, s46, s45
    s_add_u32 s46, s46, {WS_H:#x}
    """)
    for i in range(4):
        A(f"s_add_u32 s47, s46, {(i//2)*96*1024 + (i%2)*256}")
        A(f"v_add_u32 v{VA+i}, s47, v5")
    A(f"s_mul_i32 s48, s38, 5")
    for j in range(5):
        A(f"""
        s_add_u32 s47, s48, {j}
        s_and_b32 s49, s47, 1
        s_lshl_b32 s49, s49, 8
        s_lshr_b32 s47, s47, 1
        s_mul_i32 s50, s47, {96*1024}
        s_add_u32 s50, s50, s49
        s_add_u32 s50, s50, s45
        s_add_u32 s50, s50, {WS_WD:#x}
        v_add_u32 v{VA+4+j}, s50, v5
        s_mul_i32 s50, s47, {40*1024}
        s_add_u32 s50, s50, s49
        s_add_u32 s{52+j}, s50, {WS_WO:#x}
        """)
    A("s_waitcnt lgkmcnt(0)")
    srd(A, 28, 10, WS_SIZE)
    cnt = {}
    def issue(i):
        r = ring(i)
        if i < 12:
            for k in range(4): A(f"buffer_load_dwordx4 {ar(r+4*k,4)}, v{VA+k}, s[28:31], s44 offen")
            for k in range(5): A(f"buffer_load_dwordx4 {ar(r+16+4*k,4)}, v{VA+4+k}, s[28:31], s44 offen")
            A(f"""
            s_add_u32 s44, s44, 2048
            s_cmp_eq_u32 s44, {12*2048}
            s_cselect_b32 s44, 0, s44
            """)
            cnt[i] = 9
        elif i < 16:
            k0 = i - 12
            for k in range(4): A(f"buffer_load_dwordx4 {ar(r+4*k,4)}, v{VA2+k}, s[28:31], s{60+k0} offen")
            for k in range(5): A(f"buffer_load_dwordx4 {ar(r+16+4*k,4)}, v{VA2+4+k}, s[28:31], s{64+k0} offen")
            cnt[i] = 9
        else:
            for k in range(4):
                A(f"buffer_load_dwordx2 {ar(r+4*k,2)}, v{VX+k}, s[28:31], 0 offen offset:1024")
                A(f"buffer_load_dwordx2 {ar(r+4*k+2,2)}, v{VX+k}, s[28:31], 0 offen offset:2304")
            for k in range(5): A(f"buffer_load_dwordx4 {ar(r+16+4*k,4)}, v{VA2+4+k}, s[28:31], s68 offen")
            cnt[i] = 13
    issue(0)
    A.c("omg for the 4 token subtiles")
    A(f"""
    s_lshl_b32 s47, s37, 8
    s_add_u32 s47, s47, {WS_G + 8192:#x}
    v_lshlrev_b32 v6, 2, v3
    """)
    for i in range(4): A(f"buffer_load_dword v{OMG+i}, v6, s[28:31], s47 offen offset:{64*i}")
    cnt[0] += 0
    nomg = 4
    for i in range(1, D): issue(i)
    srd(A, 32, 8, 2048 * 1280)
    A.c("phase-2 addresses")
    A(f"""
    v_lshrrev_b32 v6, 1, v2
    v_mul_u32_u24 v6, 1280, v6
    v_and_b32 v7, 1, v2
    v_lshl_add_u32 v6, v7, 9, v6
    v_add_u32 v6, v6, v4
    v_mul_u32_u24 v7, 2560, v2
    v_lshl_add_u32 v7, v3, 3, v7
    s_mul_i32 s46, s37, {2*40960}
    s_mul_i32 s47, s36, {8*1280}
    s_add_u32 s46, s46, s47
    s_add_u32 s46, s46, {WS_O:#x}
    s_lshl_b32 s45, s36, 13
    s_lshl_b32 s68, s36, 11
    s_add_u32 s68, s68, {32*1024}
    s_and_b32 s51, s41, 3
    """)
    for i in range(4):
        A(f"s_add_u32 s47, s46, {(i//2)*40960 + (i%2)*256}")
        A(f"v_add_u32 v{VA2+i}, s47, v6")
        A(f"s_add_u32 s47, s46, {(i//2)*40960 + (i%2)*128}")
        A(f"v_add_u32 v{VX+i}, s47, v7")
    for j in range(5): A(f"v_add_u32 v{VA2+4+j}, s{52+j}, v5")
    for k in range(4):
        A(f"""
        s_add_u32 s47, s51, {k}
        s_and_b32 s47, s47, 3
        s_mul_i32 s{60+k}, s47, 2560
        s_lshl_b32 s47, s47, 11
        s_add_u32 s{64+k}, s47, s45
        """)
    A.c("reduction addresses")
    A(f"""
    v_mul_u32_u24 v34, {RS}, v3
    v_lshl_add_u32 v34, v2, 4, v34
    s_mul_i32 s42, s36, {WSZ}
    v_add_u32 v34, s42, v34
    s_mul_i32 s42, s37, {64*1280}
    s_mul_i32 s43, s38, 160
    s_add_u32 s42, s42, s43
    """)
    stamp(A, 1)
    for i in range(NS):
        out = sum(cnt.get(j, 0) for j in range(i + 1, min(i + D, NS))) + (nomg if i == 0 else 0)
        A(f"s_waitcnt vmcnt({out})")
        r = ring(i)
        if i == 12:
            A("s_nop 7")
            for ii in range(4):
                for k in range(10): A(f"v_pk_mul_f32 {vr(acc(ii,0)+2*k,2)}, {vr(acc(ii,0)+2*k,2)}, {vr(OMG+ii - (ii&1),2)} op_sel:[0,{ii&1}] op_sel_hi:[1,{ii&1}]")
            A("s_nop 1")
        for ii in range(4):
            for j in range(5):
                c = "0" if i == 0 else vr(acc(ii, j), 4)
                A(f"v_mfma_f32_16x16x32_bf16 {vr(acc(ii,j),4)}, {ar(r+16+4*j,4)}, {ar(r+4*ii,4)}, {c}")
        if i + D < NS: issue(i + D)
    stamp(A, 2)
    for i in range(5):
        A(f"""
        v_add_u32 v35, {256*i}, v0
        v_mul_u32_u24 v36, 3277, v35
        v_lshrrev_b32 v36, 16, v36
        v_mul_u32_u24 v37, 20, v36
        v_sub_u32 v37, v35, v37
        v_mul_u32_u24 v38, {RS}, v36
        v_lshl_add_u32 v{8+i}, v37, 4, v38
        v_mul_u32_u24 v38, 1280, v36
        v_lshl_add_u32 v{16+i}, v37, 3, v38
        """)
    for ii in range(4):
        for j in range(5):
            A(f"ds_write_b128 v34, {vr(acc(ii,j),4)} offset:{ii*16*RS + j*64}")
    A("""
    s_waitcnt lgkmcnt(0)
    s_barrier
    """)
    for i in range(5):
        for w in range(4):
            A(f"ds_read_b128 {vr(ACC+16*i+4*w,4)}, v{8+i} offset:{w*WSZ}")
    for i in range(5):
        b = ACC + 16 * i
        A(f"s_waitcnt lgkmcnt({min(15, 16-4*i)})" if i < 4 else "s_waitcnt lgkmcnt(0)")
        for k in range(2):
            A(f"v_pk_add_f32 {vr(b+2*k,2)}, {vr(b+2*k,2)}, {vr(b+4+2*k,2)}")
            A(f"v_pk_add_f32 {vr(b+8+2*k,2)}, {vr(b+8+2*k,2)}, {vr(b+12+2*k,2)}")
        for k in range(2):
            A(f"v_pk_add_f32 {vr(b+2*k,2)}, {vr(b+2*k,2)}, {vr(b+8+2*k,2)}")
        A(f"v_cvt_pk_bf16_f32 v{b+4}, v{b}, v{b+1}")
        A(f"v_cvt_pk_bf16_f32 v{b+5}, v{b+2}, v{b+3}")
        A(f"buffer_store_dwordx2 {vr(b+4,2)}, v{16+i}, s[32:35], s42 offen {STX}")
    if STAMP: A("s_waitcnt vmcnt(0)")
    stamp(A, 3); stamp_rt(A, 5)
    stamp_store(A, 9, 36, 2, vt=35)
    A("K3_END:")
    A("s_endpgm")
    A.L.append(f""".section .rodata,"a"
.p2align 6
.amdhsa_kernel {name}
  .amdhsa_next_free_vgpr {NARCH + 36 * D}
  .amdhsa_next_free_sgpr 96
  .amdhsa_accum_offset {NARCH}
  .amdhsa_group_segment_fixed_size 0
  .amdhsa_kernarg_size 88
  .amdhsa_user_sgpr_count 2
  .amdhsa_user_sgpr_kernarg_segment_ptr 1
  .amdhsa_system_sgpr_workgroup_id_x 1
.end_amdhsa_kernel""")
```

```python
import sys, re
from common import *
base = open(sys.argv[1]).read()
lines = base.split("\n")
li = [i for i, l in enumerate(lines) if l.startswith("; @launch")]
L = [lines[i] for i in li]
def write(name, launches, extra=""):
    out = lines[:li[0]] + launches + lines[li[-1]+1:]
    open(name, "w").write("\n".join(out) + extra)
A = Asm()
kernel_header(A, "empty_kernel"); A("s_endpgm"); kernel_desc(A, "empty_kernel", 8, 16)
E = "; @launch kernel=empty_kernel grid=(256,1,1) block=(256,1,1) lds=0"
write("v_empty2.s", L + [E, E], A.text())
write("v_emptyfirst.s", [E] + L, A.text())
for i in range(len(L)):
    write(f"v_dup{i+1}.s", L[:i+1] + L[i:])
```

```python
from common import *

XB = 16384
STAGE = XB + 20480
K1_LDS = 3 * STAGE
RA = int(os.environ.get('K1RA', '5'))
RB = int(os.environ.get('K1RB', '0'))
STQ = os.environ.get('K1STQ', 'sc1')
STS = os.environ.get('K1STS', '')
PF = os.environ.get('K1PF', '')
TOUCH = int(os.environ.get('K1TOUCH', '1'))
ACC0 = 48
NV = 128
def ar(a, n=1): return f"a{a}" if n == 1 else f"a[{a}:{a+n-1}]"
def acc(rt, tt): return ACC0 + 16 * (2 * rt + tt)
ACCE = ACC0 + 64
XA = 4
XB2 = 16
WA = 8; WA2 = 3
def XFR(buf, rt): return 4 * (2 * buf + rt)
def WFR(buf, t): return 16 + (buf * 3 + t) * 4
NACC = 40

def emit_reads(buf, ks):
    R = [f"ds_read_b128 {ar(XFR(buf, 0), 4)}, v{XA + ks}"]
    for t in range(3):
        for j2 in range(2):
            off = ks * 5120 + j2 * 1280 + (t * 40 if t < 2 else 0)
            R.append(f"ds_read_b64_tr_b16 {ar(WFR(buf, t) + 2 * j2, 2)}, v{WA2 if t == 2 else WA} offset:{off}")
    R.insert(3, f"ds_read_b128 {ar(XFR(buf, 1), 4)}, v{XB2 + ks}")
    return R

def consumer_loop(A, kind, lab):
    A("s_barrier")
    stamp(A, 1)
    for r in emit_reads(0, 0): A(r)
    A("s_mov_b32 s44, 0")
    A(".p2align 6")
    A(f"{lab}:")
    for ks in range(4):
        buf = ks & 1
        reads = emit_reads(buf ^ 1, (ks + 1) & 3)
        def mf(d, t, rt):
            if kind == "V": return f"v_mfma_f32_32x32x16_bf16 {vr(d,16)}, {ar(XFR(buf,rt),4)}, {ar(WFR(buf,t),4)}, {vr(d,16)}"
            return f"v_mfma_f32_32x32x16_bf16 {vr(d,16)}, {ar(WFR(buf,t),4)}, {ar(XFR(buf,rt),4)}, {vr(d,16)}"
        M = [mf(acc(0,0),0,0), mf(acc(1,0),0,1), mf(acc(0,1),1,0), mf(acc(1,1),1,1), mf(ACCE,2,0)]
        if ks == 3:
            A("s_waitcnt lgkmcnt(0)")
            A(M[0])
            A("s_cmp_eq_u32 s45, 2")
            A(f"s_mov_b32 s47, {STAGE}")
            A(f"s_cmov_b32 s47, {(-2 * STAGE) & 0xffffffff:#x}")
            A("s_add_u32 s45, s45, 1")
            A("s_cmp_eq_u32 s45, 3")
            A("s_cselect_b32 s45, 0, s45")
            A(f"v_add_u32 v{XA}, s47, v{XA}")
            A(f"v_add_u32 v{WA}, s47, v{WA}")
            A(f"v_add_u32 v{XB2}, s47, v{XB2}")
            A(f"v_add_u32 v{WA2}, s47, v{WA2}")
            A("s_barrier")
            A(M[1])
            for r in reads[0:3]: A(r)
            A(M[2])
            for r in reads[3:6]: A(r)
            A(M[3])
            for r in reads[6:8]: A(r)
            for i in range(1, 4): A(f"v_add_u32 v{XA+i}, s47, v{XA+i}")
            A(M[4])
            for i in range(1, 4): A(f"v_add_u32 v{XB2+i}, s47, v{XB2+i}")
        else:
            A("s_waitcnt lgkmcnt(5)")
            A(M[0])
            A("s_waitcnt lgkmcnt(4)")
            for r in reads[0:2]: A(r)
            A(M[1])
            A("s_waitcnt lgkmcnt(4)")
            for r in reads[2:4]: A(r)
            A(M[2])
            for r in reads[4:6]: A(r)
            A(M[3])
            A("s_waitcnt lgkmcnt(6)")
            for r in reads[6:8]: A(r)
            A(M[4])
    A("s_add_u32 s44, s44, 1")
    A("s_cmp_lt_u32 s44, 10")
    A(f"s_cbranch_scc1 {lab}")
    A("s_waitcnt lgkmcnt(0)")
    A("s_nop 15")
    stamp(A, 2)

def launch(): return f"; @launch kernel=k1_kernel grid=(256,1,1) block=(512,1,1) lds={K1_LDS}"

def gen_k1(A):
    name = "k1_kernel"
    kernel_header(A, name)
    stamp(A, 0)
    stamp_rt(A, 4)
    def fin(vt=10):
        stamp(A, 7)
        if STAMP: A("s_waitcnt vmcnt(0)")
        stamp(A, 3)
        stamp_rt(A, 5)
        stamp_store(A, 9, 36, 0, vt=vt)
        A("s_endpgm")
    A("""
    s_cmp_ge_u32 s2, 256
    s_cbranch_scc1 K1_END
    s_load_dwordx4 s[4:7], s[0:1], 0
    s_load_dwordx2 s[8:9], s[0:1], 16
    s_load_dwordx8 s[12:19], s[0:1], 32
    s_load_dwordx2 s[10:11], s[0:1], 80
    v_lshrrev_b32 v1, 6, v0
    s_and_b32 s39, s2, 7
    v_readfirstlane_b32 s36, v1
    v_and_b32 v1, 63, v0
    s_lshr_b32 s40, s2, 3
    v_lshrrev_b32 v2, 5, v1
    s_cmp_ge_u32 s40, 24
    s_cbranch_scc1 K1_AUX
    s_lshr_b32 s37, s39, 2
    s_lshl_b32 s37, s37, 3
    s_and_b32 s41, s40, 7
    s_add_u32 s37, s37, s41
    s_and_b32 s38, s39, 3
    s_lshr_b32 s42, s40, 3
    s_lshl_b32 s43, s42, 2
    s_add_u32 s38, s38, s43
    s_cmp_lt_u32 s36, 4
    s_cbranch_scc1 K1_CONS
    """)
    A(f"""
    s_mul_i32 s55, s41, {RA}
    s_mul_i32 s56, s42, {RB}
    s_add_u32 s55, s55, s56
    s_lshr_b32 s55, s55, 2
    s_cmp_ge_u32 s55, 10
    s_cselect_b32 s56, 10, 0
    s_sub_u32 s47, s55, s56
    s_sub_u32 s40, s36, 4
    v_lshrrev_b32 v4, 3, v1
    s_lshl_b32 s41, s40, 5
    v_add_u32 v4, s41, v4
    v_mul_u32_u24 v4, 1280, v4
    v_and_b32 v5, 7, v1
    v_lshrrev_b32 v6, 4, v1
    v_xor_b32 v5, v5, v6
    v_lshl_add_u32 v10, v5, 4, v4
    v_xor_b32 v11, 64, v10
    s_mul_i32 s41, s37, {128*1280}
    s_lshl_b32 s55, s47, 7
    s_add_u32 s41, s41, s55
    s_lshl_b32 s48, s40, 12
    s_mul_i32 s49, s40, 5120
    s_add_u32 s49, s49, {XB}
    s_mul_i32 s42, s38, 320
    s_mul_i32 s55, s47, {64*3840}
    s_add_u32 s42, s42, s55
    s_mul_i32 s53, s40, 320
    s_mov_b32 s43, 0
    v_add_u32 v4, s53, v1
    """)
    for i in range(5):
        A(f"""
        v_mul_u32_u24 v5, 3277, v4
        v_lshrrev_b32 v5, 16, v5
        v_mul_u32_u24 v6, 20, v5
        v_sub_u32 v6, v4, v6
        v_mul_u32_u24 v5, 3840, v5
        v_lshl_add_u32 v{12+i}, v6, 4, v5
        """)
        if i < 4: A("v_add_u32 v4, 64, v4")
    A("s_waitcnt lgkmcnt(0)")
    stamp(A, 6)
    srd(A, 20, 4, 2048 * 1280)
    srd(A, 24, 6, 640 * 3840)
    def issue_x():
        A("s_add_u32 s56, s43, s48")
        for i in range(4):
            A(f"s_add_u32 m0, s56, {i*1024}")
            A(f"s_add_u32 s57, s41, {i*10240}")
            A(f"buffer_load_dwordx4 v{10+(i&1)}, s[20:23], s57 offen lds")
    def issue_w():
        A("s_add_u32 s56, s43, s49")
        for i in range(5):
            A(f"s_add_u32 m0, s56, {i*1024}")
            A("s_nop 0")
            A(f"buffer_load_dwordx4 v{12+i}, s[24:27], s42 offen lds")
    def advance():
        A(f"""
        s_add_u32 s41, s41, 128
        s_add_u32 s42, s42, {64*3840}
        s_add_u32 s47, s47, 1
        s_cmp_eq_u32 s47, 10
        s_cselect_b32 s47, 0, s47
        s_cselect_b32 s56, 1280, 0
        s_cselect_b32 s57, s26, 0
        s_sub_u32 s41, s41, s56
        s_sub_u32 s42, s42, s57
        s_add_u32 s43, s43, {STAGE}
        s_cmp_eq_u32 s43, {3*STAGE}
        s_cselect_b32 s43, 0, s43
        """)
    stamp(A, 7)
    issue_x(); issue_w(); advance()
    issue_x()
    stamp(A, 8)
    if STAMP: srd(A, 28, 10, WS_SIZE)
    A("s_waitcnt vmcnt(4)")
    A("s_barrier")
    stamp(A, 1)
    issue_w(); advance()
    issue_x(); issue_w(); advance()
    A("""
    s_mov_b32 s44, 1
    K1_LD_LOOP:
    s_waitcnt vmcnt(9)
    s_barrier
    """)
    issue_x(); issue_w(); advance()
    A("""
    s_add_u32 s44, s44, 1
    s_cmp_lt_u32 s44, 8
    s_cbranch_scc1 K1_LD_LOOP
    s_waitcnt vmcnt(9)
    s_barrier
    s_waitcnt vmcnt(0)
    s_barrier
    s_barrier
    """)
    stamp(A, 2)
    stamp(A, 3)
    stamp_rt(A, 5)
    stamp_store(A, 9, 36, 0, vt=20)
    A("""
    K1_END:
    s_endpgm
    K1_CONS:
    """)
    A.c("x frag addresses: row = 32*tile + (l&31); addr = row*128 + (((2ks+kh) ^ ((row>>1)&7))<<4)")
    A("""
    s_and_b32 s46, s36, 1
    s_lshr_b32 s48, s36, 1
    s_lshl_b32 s40, s46, 1
    s_add_u32 s40, s40, s48
    s_xor_b32 s41, s40, 1
    v_and_b32 v9, 31, v1
    v_lshrrev_b32 v10, 1, v9
    v_and_b32 v10, 7, v10
    v_xor_b32 v10, v10, v2
    s_lshl_b32 s42, s40, 12
    s_lshl_b32 s43, s41, 12
    v_lshlrev_b32 v11, 7, v9
    """)
    for ks in range(4):
        A(f"v_xor_b32 v12, {2*ks}, v10")
        A(f"v_lshl_add_u32 v12, v12, 4, v11")
        A(f"v_add_u32 v{XA+ks}, s42, v12")
        A(f"v_add_u32 v{XB2+ks}, s43, v12")
    A.c("W frag address pieces: r=(l>>2)&3, c=l&3, colhalf=(l>>4)&1, khalf=hh ; tile t = heads (t, t+4)")
    A(f"""
    v_lshrrev_b32 v12, 2, v1
    v_and_b32 v12, 3, v12
    v_lshl_add_u32 v12, v2, 3, v12
    v_and_b32 v13, 3, v1
    v_lshrrev_b32 v14, 4, v1
    v_and_b32 v14, 1, v14
    s_mov_b32 s45, 0
    v_mul_u32_u24 v12, 320, v12
    v_mul_u32_u24 v15, 160, v14
    v_add_u32 v12, v15, v12
    v_add_u32 v12, {XB}, v12
    v_mul_u32_u24 v10, 40, v13
    v_add_u32 v10, 32, v10
    v_add_u32 v{WA2}, v12, v10
    s_mul_i32 s42, s48, 80
    v_add_u32 v12, s42, v12
    """)
    for i in range(80): A(f"v_mov_b32 v{ACC0+i}, 0")
    A("s_waitcnt lgkmcnt(0)")
    stamp(A, 6)
    srd(A, 28, 10, WS_SIZE)
    A(f"""
    s_lshl_b32 s54, s37, 2
    s_and_b32 s53, s38, 3
    s_mul_i32 s55, s53, {8*VHEAD}
    s_add_u32 s56, s54, s41
    s_add_u32 s54, s54, s40
    s_mul_i32 s54, s54, 1280
    s_mul_i32 s56, s56, 1280
    s_add_u32 s56, s56, s55
    s_add_u32 s55, s55, s54
    s_mov_b32 s57, {VHEAD}
    s_mul_i32 s58, s48, {2*VHEAD}
    s_cmp_ge_u32 s38, 8
    s_cbranch_scc1 K1_V
    v_and_b32 v14, 1, v13
    v_lshl_add_u32 v12, v14, 4, v12
    v_lshrrev_b32 v14, 1, v13
    v_lshl_add_u32 v{WA}, v14, 3, v12
    s_cmp_lt_u32 s38, 4
    s_cselect_b32 s50, {f2u(QSCALE):#x}, 1.0
    s_mov_b32 s51, s50
    s_cselect_b32 s52, {WS_Q:#x}, {WS_K:#x}
    s_add_u32 s55, s55, s52
    s_add_u32 s56, s56, s52
    v_lshlrev_b32 v10, 4, v1
    v_lshlrev_b32 v11, 3, v9
    v_mad_u32_u24 v11, v2, s57, v11
    s_add_u32 s60, s55, s58
    s_add_u32 s61, s56, s58
    """)
    consumer_loop(A, "QK", "K1_QK_LOOP")
    A.c("QK epilogue: block [head][T]: main 1KB lane-linear, extras [tok][8B] at +1024")
    tmp = 20
    def nxt():
        nonlocal tmp
        d = tmp; tmp = 20 + (tmp - 20 + 4) % 28
        return d
    for rt in range(2):
        for tt in range(2):
            for hp in range(2):
                A(f"s_add_u32 s59, s{60+rt}, {(tt+4*hp)*VHEAD:#x}")
                r0 = acc(rt, tt) + 8 * hp
                d = nxt()
                for i in range(4):
                    A(f"v_pk_mul_f32 {vr(r0+2*i,2)}, {vr(r0+2*i,2)}, s[50:51]")
                for i in range(4):
                    A(f"v_cvt_pk_bf16_f32 v{d+i}, v{r0+2*i}, v{r0+2*i+1}")
                A(f"buffer_store_dwordx4 {vr(d,4)}, v10, s[28:31], s59 offen {STQ}")
    for a in range(4):
        A(f"s_add_u32 s59, s55, {2*a*VHEAD:#x}")
        d = nxt()
        r0 = ACCE + 4 * a
        for i in range(2):
            A(f"v_pk_mul_f32 {vr(r0+2*i,2)}, {vr(r0+2*i,2)}, s[50:51]")
        for i in range(2):
            A(f"v_cvt_pk_bf16_f32 v{d+i}, v{r0+2*i}, v{r0+2*i+1}")
        A(f"buffer_store_dwordx2 {vr(d,2)}, v11, s[28:31], s59 offen offset:1024 {STQ}")
    fin()
    A("K1_V:")
    A(f"""
    v_lshl_add_u32 v{WA}, v13, 3, v12
    s_add_u32 s55, s55, {WS_V:#x}
    s_add_u32 s56, s56, {WS_V:#x}
    s_add_u32 s60, s55, s58
    s_add_u32 s61, s56, s58
    s_mov_b32 s62, {4*VHEAD}
    v_and_b32 v10, 15, v1
    v_lshlrev_b32 v10, 4, v10
    v_lshl_add_u32 v10, v2, 8, v10
    v_mad_u32_u24 v10, v14, s62, v10
    v_lshlrev_b32 v11, 4, v13
    v_lshl_add_u32 v11, v2, 6, v11
    v_lshrrev_b32 v12, 2, v1
    v_and_b32 v12, 7, v12
    v_mad_u32_u24 v11, v12, s57, v11
    """)
    consumer_loop(A, "V", "K1_V_LOOP")
    A.c("V epilogue: block per (head,T,f) = 640B: [hh0 d0-15][hh1 d0-15][hh0 d16-19][hh1 d16-19]")
    for rt in range(2):
        for tt in range(2):
            A(f"s_add_u32 s59, s{60+rt}, {tt*VHEAD:#x}")
            for f in range(2):
                r0 = acc(rt, tt) + 8 * f
                d = nxt()
                for i in range(4):
                    A(f"v_cvt_pk_bf16_f32 v{d+i}, v{r0+2*i}, v{r0+2*i+1}")
                A(f"buffer_store_dwordx4 {vr(d,4)}, v10, s[28:31], s59 offen offset:{f*640} {STQ}")
    for f in range(2):
        r0 = ACCE + 8 * f
        d = nxt()
        for i in range(4):
            A(f"v_cvt_pk_bf16_f32 v{d+i}, v{r0+2*i}, v{r0+2*i+1}")
        A(f"buffer_store_dwordx4 {vr(d,4)}, v11, s[28:31], s55 offen offset:{512+f*640} {STQ}")
    fin()
    A("K1_AUX:")
    A(f"""
    s_sub_u32 s40, s40, 24
    s_lshl_b32 s40, s40, 3
    s_add_u32 s40, s40, s39
    v_lshlrev_b32 v3, 4, v1
    v_lshlrev_b32 v4, 1, v1
    v_and_b32 v5, 31, v1
    v_lshlrev_b32 v5, 4, v5
    s_mul_i32 s41, s40, 40960
    s_mul_i32 s42, s36, 5120
    s_add_u32 s41, s41, s42
    s_lshl_b32 s58, s40, 3
    s_add_u32 s58, s58, s36
    s_waitcnt lgkmcnt(0)
    """)
    stamp(A, 6)
    srd(A, 20, 4, 2048 * 1280)
    srd(A, 24, 18, 1280)
    srd(A, 28, 10, WS_SIZE)
    if "code" in PF:
        A.c("pull the next launches' code towards this die: wave (a',w) reads 1KB at (8a'+w)*... for the first 16KB")
        A("""
        s_getpc_b64 s[68:69]
        K1_PC:
        s_add_u32 s68, s68, k2_kernel-K1_PC
        s_addc_u32 s69, s69, 0
        s_lshr_b32 s44, s40, 3
        s_lshl_b32 s44, s44, 3
        s_add_u32 s44, s44, s36
        s_lshl_b32 s44, s44, 8
        v_lshlrev_b32 v126, 2, v1
        v_add_u32 v126, s44, v126
        global_load_dword v127, v126, s[68:69]
        """)
    if "tlb" in PF:
        A.c("one load per 2MB page of the workspace and the output")
        A("""
        s_load_dwordx2 s[44:45], s[0:1], 64
        v_lshlrev_b32 v125, 21, v1
        buffer_load_dword v124, v125, s[28:31], 0 offen
        s_waitcnt lgkmcnt(0)
        s_mov_b32 s46, 0x280000
        s_mov_b32 s47, 0x00020000
        v_lshlrev_b32 v125, 20, v1
        buffer_load_dword v123, v125, s[44:47], 0 offen
        """)
    A("s_mov_b32 m0, s42")
    A("s_add_u32 s43, s41, 4096")
    for i in range(4): A(f"buffer_load_dwordx4 v3, s[20:23], s41 offen offset:{i*1024} lds")
    A("s_add_u32 m0, s42, 4096")
    A("s_nop 0")
    A("buffer_load_dwordx4 v3, s[20:23], s43 offen lds")
    A("s_mov_b32 m0, 40960")
    A("s_nop 0")
    A("buffer_load_dwordx4 v3, s[24:27], 0 offen lds")
    A("buffer_load_dwordx4 v3, s[24:27], 0 offen offset:1024 lds")
    A.c("weight re-layout: unit U = a*8+w + 512n (U < 1360): (ct pair, s); lane = column, 16 k rows")
    A("s_mov_b32 s35, 0x00020000")
    for n in range(3):
        A(f"""
        s_add_u32 s59, s58, {512*n}
        s_min_u32 s59, s59, 1359
        s_cmp_lt_u32 s59, 960
        s_cselect_b32 s32, s16, s8
        s_cselect_b32 s33, s17, s9
        s_mov_b32 s34, {640*1280}
        s_cmov_b32 s34, {1536*1280}
        s_cselect_b32 s60, 0, 960
        s_cselect_b32 s46, 96, 40
        s_mov_b32 s62, {(1<<32)//40+1:#x}
        s_cmov_b32 s62, {(1<<32)//96+1:#x}
        s_cselect_b32 s67, 16, 20
        s_cselect_b32 s50, 8, 4
        s_cselect_b32 s51, 4, 8
        s_cselect_b32 s52, 1000, 32
        s_mov_b32 s47, {WS_WO:#x}
        s_cmov_b32 s47, {WS_WD:#x}
        s_sub_u32 s60, s59, s60
        s_mul_hi_u32 s63, s60, s62
        s_mul_i32 s61, s63, s46
        s_sub_u32 s60, s60, s61
        s_lshl_b32 s48, s61, 1
        s_add_u32 s48, s48, s60
        s_lshl_b32 s48, s48, 10
        s_add_u32 s{64+n}, s48, s47
        s_lshl_b32 s46, s46, 10
        v_mad_u32_u24 v{6+n}, v2, s46, v5
        s_mul_i32 s61, s60, s67
        s_mul_i32 s53, s60, 80
        s_sub_u32 s53, s53, {32*80-16}
        s_cmp_ge_u32 s60, s52
        s_cselect_b32 s61, s53, s61
        s_cselect_b32 s50, 40, s50
        s_cselect_b32 s51, 20, s51
        s_mul_i32 s60, s61, 1280
        s_lshl_b32 s63, s63, 7
        s_add_u32 s60, s60, s63
        s_mul_i32 s51, s51, 1280
        s_mul_i32 s50, s50, 1280
        s_add_u32 s61, s60, s51
        s_add_u32 s62, s60, s50
        s_add_u32 s63, s62, s51
        """)
        for kh in range(2):
            for j in range(8):
                reg = 16 + 16 * n + 8 * kh + j // 2 + 4 * (j & 1)
                A(f"buffer_load_ushort v{reg}, v4, s[32:35], s{60 + 2 * kh + j // 4} offen offset:{(j % 4) * 1280}")
    A.c("gate: thread = (row = tid/16, part = tid%16), 40 elements each")
    A(f"""
    v_lshrrev_b32 v10, 4, v0
    v_and_b32 v11, 15, v0
    v_mul_u32_u24 v12, 80, v11
    v_mul_u32_u24 v13, 1280, v10
    v_add_u32 v13, v13, v12
    v_add_u32 v12, 40960, v12
    s_waitcnt vmcnt(48)
    s_barrier
    """)
    for i in range(5):
        A(f"ds_read_b128 {vr(64+4*i,4)}, v13 offset:{16*i}")
        A(f"ds_read_b128 {vr(84+4*i,4)}, v12 offset:{16*i}")
    A("v_mov_b32 v104, 0")
    A("v_mov_b32 v105, 0")
    A("s_waitcnt lgkmcnt(0)")
    for i in range(20): A(f"v_dot2_f32_bf16 v{104+(i&1)}, v{64+i}, v{84+i}, v{104+(i&1)}")
    A("s_nop 2")
    A("v_add_f32 v104, v104, v105")
    for sh in (8, 4, 2, 1):
        A("s_nop 1")
        A(f"v_add_f32_dpp v104, v104, v104 row_ror:{sh} row_mask:0xf bank_mask:0xf")
    A(f"""
    v_cvt_pk_bf16_f32 v104, v104, v104
    v_and_b32 v104, 0xffff0000, v104
    v_mul_f32 v104, {f2u(-LOG2E):#x}, v104
    v_exp_f32 v104, v104
    s_nop 0
    v_add_f32 v104, 1.0, v104
    v_rcp_f32 v104, v104
    s_nop 0
    v_cvt_pk_bf16_f32 v104, v104, v104
    v_and_b32 v104, 0xffff0000, v104
    v_sub_f32 v105, 1.0, v104
    v_cvt_pk_bf16_f32 v105, v105, v105
    v_and_b32 v105, 0xffff0000, v105
    s_lshl_b32 s54, s40, 7
    s_add_u32 s54, s54, {WS_G:#x}
    s_add_u32 s55, s54, 8192
    v_lshlrev_b32 v106, 2, v10
    v_cmp_ne_u32 vcc, 0, v11
    v_mov_b32 v107, 0x7f000000
    s_nop 0
    v_cndmask_b32 v106, v106, v107, vcc
    v_mov_b32 v108, 0x3f803f80
    v_mov_b32 v109, 0x3f803f80
    v_mov_b32 v110, 0x3f803f80
    v_mov_b32 v111, 0x3f803f80
    s_lshl_b32 s56, s36, 10
    s_add_u32 s56, s56, {WS_ONES:#x}
    s_cmp_eq_u32 s40, 0
    s_cselect_b32 s56, s56, 0x7f000000
    """)
    if TOUCH:
        A.c("touch the w_gate / w_up columns this die needs in the next launch: rows 80a'+10w.., 768B at 768*(x&3)")
        A(f"""
        s_mov_b32 s34, {640*3072}
        s_mov_b32 s32, s12
        s_mov_b32 s33, s13
        s_lshr_b32 s57, s40, 3
        s_mul_i32 s57, s57, 80
        s_mul_i32 s59, s36, 10
        s_add_u32 s57, s57, s59
        s_mul_i32 s57, s57, 3072
        s_and_b32 s59, s39, 3
        s_mul_i32 s59, s59, 768
        s_add_u32 s57, s57, s59
        """)
        for i in range(8):
            A(f"""
            v_add_u32 v112, {64*i}, v1
            v_min_u32 v112, 479, v112
            v_mul_u32_u24 v113, 1366, v112
            v_lshrrev_b32 v113, 16, v113
            v_mul_u32_u24 v114, 48, v113
            v_sub_u32 v114, v112, v114
            v_mul_u32_u24 v113, 3072, v113
            v_lshl_add_u32 v{116+i}, v114, 4, v113
            buffer_load_dwordx4 {vr(64+4*i,4)}, v{116+i}, s[32:35], s57 offen
            """)
        A("s_mov_b32 s32, s14")
        A("s_mov_b32 s33, s15")
        for i in range(8):
            A(f"buffer_load_dwordx4 {ar(4*i,4)}, v{116+i}, s[32:35], s57 offen")
    A(f"s_waitcnt vmcnt({16 if TOUCH else 0})")
    for n in range(3):
        for kh in range(2):
            b = 16 + 16 * n + 8 * kh
            for i in range(4):
                A(f"v_lshl_or_b32 v{b+i}, v{b+4+i}, 16, v{b+i}")
            A(f"buffer_store_dwordx4 {vr(b,4)}, v{6+n}, s[28:31], s{64+n} offen offset:{kh*512} {STS}")
    A("""
    buffer_store_dword v104, v106, s[28:31], s54 offen
    buffer_store_dword v105, v106, s[28:31], s55 offen
    buffer_store_dwordx4 v[108:111], v3, s[28:31], s56 offen
    """)
    stamp(A, 1); stamp(A, 2)
    fin(vt=124)
    A.L.append(f""".section .rodata,"a"
.p2align 6
.amdhsa_kernel {name}
  .amdhsa_next_free_vgpr {NV + NACC}
  .amdhsa_next_free_sgpr 96
  .amdhsa_accum_offset {NV}
  .amdhsa_group_segment_fixed_size 0
  .amdhsa_kernarg_size 88
  .amdhsa_user_sgpr_count 2
  .amdhsa_user_sgpr_kernarg_segment_ptr 1
  .amdhsa_system_sgpr_workgroup_id_x 1
.end_amdhsa_kernel""")
```

```python
import math, struct

NAME = "gated_mix__softmax_full_mha__glu_gated_geglu__prompt"
WS_Q  = 0x0000000
WS_K  = 0x0280000
WS_V  = 0x0510000
VHEAD = 64 * 1280
WS_ONES = WS_V - 8192
WS_H  = 0x0900000
WS_O  = 0x0F00000
WS_WD = 0x1180000
WS_WO = WS_WD + 1920 * 1024
WS_G  = 0x1480000
WS_F  = 0x1490000
WS_B  = 0x1500000
WS_SIZE = 0x2000000

def f2u(x):
    return struct.unpack("<I", struct.pack("<f", x))[0]

LOG2E = 1.4426950408889634
QSCALE = LOG2E / math.sqrt(20.0)

class Asm:
    def __init__(self):
        self.L = []
    def __call__(self, s, *a):
        for line in s.split("\n"):
            line = line.strip()
            if not line: continue
            if line.endswith(":") or line.startswith("."):
                self.L.append(line)
            else:
                self.L.append("    " + line)
    def c(self, s):
        self.L.append("    ; " + s)
    def text(self):
        return "\n".join(self.L) + "\n"

def vr(a, n=1):
    return f"v{a}" if n == 1 else f"v[{a}:{a+n-1}]"
def sr(a, n=1):
    return f"s{a}" if n == 1 else f"s[{a}:{a+n-1}]"

def kernel_header(A, name):
    A(f""".text
.globl {name}
.p2align 8
.type {name},@function
{name}:""")

def kernel_desc(A, name, nvgpr, nsgpr=96):
    acc = (nvgpr + 3) // 4 * 4
    A.L.append(f""".section .rodata,"a"
.p2align 6
.amdhsa_kernel {name}
  .amdhsa_next_free_vgpr {nvgpr}
  .amdhsa_next_free_sgpr {nsgpr}
  .amdhsa_accum_offset {acc}
  .amdhsa_group_segment_fixed_size 0
  .amdhsa_kernarg_size 88
  .amdhsa_user_sgpr_count 2
  .amdhsa_user_sgpr_kernarg_segment_ptr 1
  .amdhsa_system_sgpr_workgroup_id_x 1
.end_amdhsa_kernel""")

def srd(A, d, base, nbytes):
    A(f"s_mov_b32 s{d}, s{base}")
    A(f"s_mov_b32 s{d+1}, s{base+1}")
    A(f"s_mov_b32 s{d+2}, {nbytes:#x}")
    A(f"s_mov_b32 s{d+3}, 0x00020000")

WS_DBG = 0x1C00000
import os
STAMP = bool(int(os.environ.get("STAMP", "0")))
def stamp(A, i, base=72):
    if STAMP:
        A(f"s_memtime s[{base+2*i}:{base+1+2*i}]")
def stamp_rt(A, i, base=72):
    if STAMP:
        A(f"s_memrealtime s[{base+2*i}:{base+1+2*i}]")
def stamp_store(A, n, wave_sgpr, kidx, srd=28, vt=250, base=72):
    if not STAMP: return
    A("s_waitcnt lgkmcnt(0)")
    if os.environ.get("DBGSTAMP"):
        A("s_load_dwordx2 s[0:1], s[0:1], 72")
        A("s_waitcnt lgkmcnt(0)")
        A(f"s_sub_u32 s0, s0, {512*kidx}")
        A("s_subb_u32 s1, s1, 0")
        A("s_mov_b64 exec, 1")
        A(f"s_cmp_lg_u32 s{wave_sgpr}, 0")
        A(f"s_cbranch_scc1 DBG_SKIP_{kidx}_{len(A.L)}")
        lab = f"DBG_SKIP_{kidx}_{len(A.L)-1}"
        for rep in range(3):
            A(f"v_mov_b32 v{vt}, {512*rep}")
            A(f"s_not_b32 s3, s{base+8}")
            A(f"v_mov_b32 v{vt+1}, s3")
            A(f"global_atomic_umax v{vt}, v{vt+1}, s[0:1] offset:{kidx*16}")
            A(f"v_mov_b32 v{vt+1}, s{base+10}")
            A(f"global_atomic_umax v{vt}, v{vt+1}, s[0:1] offset:{kidx*16+4}")
            for i in (1, 2):
                A(f"s_sub_u32 s3, s{base+2*i}, s{base}")
                A(f"v_mov_b32 v{vt+1}, s3")
                A(f"global_atomic_umax v{vt}, v{vt+1}, s[0:1] offset:{kidx*16+4+4*i}")
        A(lab + ":")
        return
    A(f"s_lshl_b32 s3, s2, 4")
    A(f"s_add_u32 s3, s3, s{wave_sgpr}")
    A(f"s_lshl_b32 s3, s3, 6")
    A(f"s_add_u32 s3, s3, {WS_DBG + kidx*0x40000:#x}")
    A(f"v_mov_b32 v{vt}, 0")
    A(f"s_getreg_b32 s0, hwreg(HW_REG_XCC_ID)")
    A(f"v_mov_b32 v{vt+1}, s0")
    A(f"buffer_store_dword v{vt+1}, v{vt}, s[{srd}:{srd+3}], s3 offen offset:60")
    A("s_nop 1")
    for i in range(n):
        A(f"v_mov_b32 v{vt+1}, s{base+2*i}")
        A(f"buffer_store_dword v{vt+1}, v{vt}, s[{srd}:{srd+3}], s3 offen offset:{4*i}")
        A("s_nop 1")

def srd_off(A, d, base, off_sgpr, nbytes):
    A(f"s_add_u32 s{d}, s{base}, {off_sgpr}")
    A(f"s_addc_u32 s{d+1}, s{base+1}, 0")
    A(f"s_mov_b32 s{d+2}, {nbytes}")
    A(f"s_mov_b32 s{d+3}, 0x00020000")

MST = {"start": 0, "p1b0": 1, "p1end": 2, "end": 3, "rt0": 4, "rt1": 5, "f1": 6, "s1": 7, "p2loop": 8, "f2": 9, "s2": 10}
def mst(A, name):
    if not STAMP: return
    i = MST[name]
    A(f"{'s_memrealtime' if name in ('rt0', 'rt1') else 's_memtime'} s[{80+2*i}:{81+2*i}]")
    A("s_waitcnt lgkmcnt(0)")
SPIN = 1 << 20
SLEEP = int(os.environ.get('SLEEP', '2'))
def poll(A, lab, load, vreg, want, sc=3, barrier=True):
    A(f"""
    s_cmp_lg_u32 s36, 0
    s_cbranch_scc1 {lab}_DONE
    s_mov_b32 s{sc}, {SPIN}
    {lab}_SPIN:
    {load}
    s_waitcnt vmcnt(0)
    v_cmp_ne_u32 vcc, {want}, v{vreg}
    s_sub_u32 s{sc}, s{sc}, 1
    s_cbranch_scc1 {lab}_DONE
    s_cbranch_vccz {lab}_DONE
    s_sleep {SLEEP}
    s_branch {lab}_SPIN
    {lab}_DONE:
    """)
    if barrier: A("s_barrier")

def publish(A, lab, base, vt):
    A(f"""
    s_lshl_b32 s3, s2, 7
    s_add_u32 s3, s3, {base:#x}
    v_lshlrev_b32 v{vt}, 4, v0
    v_mov_b32 v{vt+2}, 1
    v_mov_b32 v{vt+3}, 1
    v_mov_b32 v{vt+4}, 1
    v_mov_b32 v{vt+5}, 1
    s_waitcnt vmcnt(0)
    s_barrier
    s_cmp_lg_u32 s36, 0
    s_cbranch_scc1 {lab}
    s_mov_b64 exec, 0xff
    buffer_store_dwordx4 v[{vt+2}:{vt+5}], v{vt}, s[28:31], s3 offen sc1
    s_mov_b64 exec, -1
    {lab}:
    """)
```

```python
from common import *
XB = 16384
STAGE = XB + 20480
P1_LDS = 3 * STAGE
RA = int(os.environ.get('K1RA', '5'))
RB = int(os.environ.get('K1RB', '0'))
TOUCH = int(os.environ.get('K1TOUCH', '1'))
ST = "sc1"
ACC0 = 48
def ar(a, n=1): return f"a{a}" if n == 1 else f"a[{a}:{a+n-1}]"
def acc(rt, tt): return ACC0 + 16 * (2 * rt + tt)
ACCE = ACC0 + 64
XA = 4; XB2 = 16; WA = 8; WA2 = 3
DX = 176; DW = 180
SX, SW = 20, 24
def XFR(buf, rt): return 4 * (2 * buf + rt)
def WFR(buf, t): return 16 + (buf * 3 + t) * 4

def emit_reads(buf, ks):
    R = [f"ds_read_b128 {ar(XFR(buf, 0), 4)}, v{XA + ks}"]
    for t in range(3):
        for j2 in range(2):
            off = ks * 5120 + j2 * 1280 + (t * 40 if t < 2 else 0)
            R.append(f"ds_read_b64_tr_b16 {ar(WFR(buf, t) + 2 * j2, 2)}, v{WA2 if t == 2 else WA} offset:{off}")
    R.insert(3, f"ds_read_b128 {ar(XFR(buf, 1), 4)}, v{XB2 + ks}")
    return R
def dma(i):
    if i < 4: return f"buffer_load_dwordx4 v{DX+i}, {sr(SX,4)}, 0 offen offset:{i*1024} lds"
    return f"buffer_load_dwordx4 v{DW+i-4}, {sr(SW,4)}, 0 offen offset:{((i-4)%4)*1024} lds"
M0 = {0: "s_add_u32 m0, s43, s48", 4: "s_add_u32 m0, s43, s49", 8: "s_add_u32 m0, s43, s63"}
ADV = ["s_add_u32 s47, s47, 1", "s_cmp_eq_u32 s47, 10", "s_cselect_b32 s47, 0, s47", "s_cselect_b32 s64, s66, s67",
       "s_cselect_b32 s65, s68, s69", "s_cselect_b32 s62, -1, 0",
       f"s_add_u32 s{SX}, s{SX}, s64", f"s_addc_u32 s{SX+1}, s{SX+1}, s62",
       f"s_add_u32 s{SW}, s{SW}, s65", f"s_addc_u32 s{SW+1}, s{SW+1}, s62"]
def issue_all(A, lo=0, hi=9):
    for i in range(lo, hi):
        if i in M0: A(M0[i]); A("s_nop 0")
        A(dma(i))

def consumer_loop(A, kind, lab):
    A("s_waitcnt vmcnt(9)")
    A("s_barrier")
    mst(A, "p1b0")
    for r in emit_reads(0, 0): A(r)
    A(M0[0])
    A("s_mov_b32 s44, 0")
    A(dma(0)); A(dma(1))
    A(".p2align 6")
    A(f"{lab}:")
    for ks in range(4):
        buf = ks & 1
        reads = emit_reads(buf ^ 1, (ks + 1) & 3)
        def mf(d, t, rt):
            if kind == "V": return f"v_mfma_f32_32x32x16_bf16 {vr(d,16)}, {ar(XFR(buf,rt),4)}, {ar(WFR(buf,t),4)}, {vr(d,16)}"
            return f"v_mfma_f32_32x32x16_bf16 {vr(d,16)}, {ar(WFR(buf,t),4)}, {ar(XFR(buf,rt),4)}, {vr(d,16)}"
        M = [mf(acc(0,0),0,0), mf(acc(1,0),0,1), mf(acc(0,1),1,0), mf(acc(1,1),1,1), mf(ACCE,2,0)]
        if ks == 3:
            A("s_waitcnt lgkmcnt(0)")
            A(M[0])
            A("s_mov_b32 s43, s45")
            A(f"s_add_u32 s45, s45, {STAGE}")
            A(f"s_cmp_eq_u32 s45, {3*STAGE}")
            A("s_cselect_b32 s45, 0, s45")
            A("s_cselect_b32 s46, s70, s71")
            A(f"v_add_u32 v{XA}, s46, v{XA}")
            A(f"v_add_u32 v{WA}, s46, v{WA}")
            A(f"v_add_u32 v{XB2}, s46, v{XB2}")
            A(f"v_add_u32 v{WA2}, s46, v{WA2}")
            A("s_waitcnt vmcnt(9)")
            A("s_barrier")
            A(M[1])
            for r in reads[0:3]: A(r)
            A(M[2])
            for r in reads[3:6]: A(r)
            A(M[3])
            for r in reads[6:8]: A(r)
            A(M0[0])
            for i in range(1, 4): A(f"v_add_u32 v{XA+i}, s46, v{XA+i}")
            A(dma(0))
            A(M[4])
            for i in range(1, 4): A(f"v_add_u32 v{XB2+i}, s46, v{XB2+i}")
            A(dma(1))
        else:
            D = {0: [2, 3, 4], 1: [5, 6, 7], 2: [8]}[ks]
            A("s_waitcnt lgkmcnt(5)")
            A(M[0])
            A("s_waitcnt lgkmcnt(4)")
            for r in reads[0:2]: A(r)
            A(M[1])
            A("s_waitcnt lgkmcnt(4)")
            for r in reads[2:4]: A(r)
            if ks == 2: A(M0[8])
            A(M[2])
            for r in reads[4:6]: A(r)
            A(dma(D[0]))
            A(M[3])
            A("s_waitcnt lgkmcnt(6)")
            for r in reads[6:8]: A(r)
            if len(D) > 1: A(dma(D[1]))
            if ks == 0: A(M0[4])
            A(M[4])
            if len(D) > 2: A(dma(D[2]))
            if ks == 2:
                for l in ADV: A(l)
                A("s_cmp_ge_u32 s44, 7")
                A(f"s_cselect_b32 s{SX+2}, 0, s{SX+2}")
                A(f"s_cselect_b32 s{SW+2}, 0, s{SW+2}")
    A("s_add_u32 s44, s44, 1")
    A("s_cmp_lt_u32 s44, 10")
    A(f"s_cbranch_scc1 {lab}")
    A("s_waitcnt vmcnt(0) lgkmcnt(0)")
    A("s_nop 15")
    mst(A, "p1end")

def gen_p1(A, done):
    A(f"""
    s_load_dwordx4 s[4:7], s[0:1], 0
    s_load_dwordx2 s[8:9], s[0:1], 16
    s_load_dwordx8 s[12:19], s[0:1], 32
    s_load_dwordx2 s[10:11], s[0:1], 80
    v_lshrrev_b32 v1, 6, v0
    s_and_b32 s39, s2, 7
    v_readfirstlane_b32 s36, v1
    v_and_b32 v1, 63, v0
    s_lshr_b32 s40, s2, 3
    v_lshrrev_b32 v2, 5, v1
    s_cmp_ge_u32 s40, 24
    s_cbranch_scc1 P1_AUX
    s_lshr_b32 s37, s39, 2
    s_lshl_b32 s37, s37, 3
    s_and_b32 s41, s40, 7
    s_add_u32 s37, s37, s41
    s_and_b32 s38, s39, 3
    s_lshr_b32 s42, s40, 3
    s_lshl_b32 s43, s42, 2
    s_add_u32 s38, s38, s43
    s_mul_i32 s55, s41, {RA}
    s_mul_i32 s56, s42, {RB}
    s_add_u32 s55, s55, s56
    s_lshr_b32 s55, s55, 2
    s_cmp_ge_u32 s55, 10
    s_cselect_b32 s56, 10, 0
    s_sub_u32 s47, s55, s56
    v_lshrrev_b32 v4, 3, v1
    s_lshl_b32 s41, s36, 5
    v_add_u32 v4, s41, v4
    v_mul_u32_u24 v4, 1280, v4
    v_and_b32 v5, 7, v1
    v_lshrrev_b32 v6, 4, v1
    v_xor_b32 v5, v5, v6
    v_lshl_add_u32 v{DX}, v5, 4, v4
    v_xor_b32 v4, 64, v{DX}
    v_add_u32 v{DX+1}, {10240-1024}, v4
    v_add_u32 v{DX+2}, {2*(10240-1024)}, v{DX}
    v_add_u32 v{DX+3}, {3*(10240-1024)}, v4
    s_mul_i32 s41, s37, {128*1280}
    s_lshl_b32 s55, s47, 7
    s_add_u32 s41, s41, s55
    s_lshl_b32 s48, s36, 12
    s_mul_i32 s49, s36, 5120
    s_add_u32 s49, s49, {XB}
    s_add_u32 s63, s49, 4096
    s_mul_i32 s42, s38, 320
    s_mul_i32 s55, s47, {64*3840}
    s_add_u32 s42, s42, s55
    s_mul_i32 s53, s36, 320
    s_mov_b32 s43, 0
    v_add_u32 v4, s53, v1
    s_mov_b32 s66, {(-9*128) & 0xffffffff:#x}
    s_movk_i32 s67, 128
    s_mov_b32 s68, {(-9*64*3840) & 0xffffffff:#x}
    s_mov_b32 s69, {64*3840}
    s_mov_b32 s70, {(-2*STAGE) & 0xffffffff:#x}
    s_mov_b32 s71, {STAGE}
    """)
    for i in range(5):
        A(f"""
        v_mul_u32_u24 v5, 3277, v4
        v_lshrrev_b32 v5, 16, v5
        v_mul_u32_u24 v6, 20, v5
        v_sub_u32 v6, v4, v6
        v_mul_u32_u24 v5, 3840, v5
        v_lshl_add_u32 v{DW+i}, v6, 4, v5
        """)
        if i % 4: A(f"v_subrev_u32 v{DW+i}, {(i%4)*1024}, v{DW+i}")
        if i < 4: A("v_add_u32 v4, 64, v4")
    A("s_waitcnt lgkmcnt(0)")
    srd_off(A, SX, 4, "s41", 2048 * 1280)
    srd_off(A, SW, 6, "s42", 640 * 3840)
    issue_all(A)
    for l in ADV: A(l)
    A(f"s_mov_b32 s43, {STAGE}")
    A.c("x frag addresses: row = 32*tile + (l&31); addr = row*128 + (((2ks+kh) ^ ((row>>1)&7))<<4)")
    A("""
    s_and_b32 s46, s36, 1
    s_lshr_b32 s58, s36, 1
    s_lshl_b32 s40, s46, 1
    s_add_u32 s40, s40, s58
    s_xor_b32 s41, s40, 1
    v_and_b32 v9, 31, v1
    v_lshrrev_b32 v10, 1, v9
    v_and_b32 v10, 7, v10
    v_xor_b32 v10, v10, v2
    s_lshl_b32 s42, s40, 12
    s_lshl_b32 s53, s41, 12
    v_lshlrev_b32 v11, 7, v9
    """)
    for ks in range(4):
        A(f"v_xor_b32 v12, {2*ks}, v10")
        A(f"v_lshl_add_u32 v12, v12, 4, v11")
        A(f"v_add_u32 v{XA+ks}, s42, v12")
        A(f"v_add_u32 v{XB2+ks}, s53, v12")
    issue_all(A, 0, 4)
    A.c("W frag address pieces: r=(l>>2)&3, c=l&3, colhalf=(l>>4)&1, khalf=hh ; tile t = heads (t, t+4)")
    A(f"""
    v_lshrrev_b32 v12, 2, v1
    v_and_b32 v12, 3, v12
    v_lshl_add_u32 v12, v2, 3, v12
    v_and_b32 v13, 3, v1
    v_lshrrev_b32 v14, 4, v1
    v_and_b32 v14, 1, v14
    s_mov_b32 s45, 0
    v_mul_u32_u24 v12, 320, v12
    v_mul_u32_u24 v15, 160, v14
    v_add_u32 v12, v15, v12
    v_add_u32 v12, {XB}, v12
    v_mul_u32_u24 v10, 40, v13
    v_add_u32 v10, 32, v10
    v_add_u32 v{WA2}, v12, v10
    s_mul_i32 s42, s58, 80
    v_add_u32 v12, s42, v12
    """)
    for i in range(40): A(f"v_pk_mov_b32 {vr(ACC0+2*i,2)}, 0, 0")
    issue_all(A, 4, 9)
    for l in ADV: A(l)
    A(f"s_mov_b32 s43, {2*STAGE}")
    srd(A, 28, 10, WS_SIZE)
    A(f"""
    s_lshl_b32 s54, s37, 2
    s_and_b32 s53, s38, 3
    s_mul_i32 s55, s53, {8*VHEAD}
    s_add_u32 s56, s54, s41
    s_add_u32 s54, s54, s40
    s_mul_i32 s54, s54, 1280
    s_mul_i32 s56, s56, 1280
    s_add_u32 s56, s56, s55
    s_add_u32 s55, s55, s54
    s_mov_b32 s57, {VHEAD}
    s_mul_i32 s58, s58, {2*VHEAD}
    s_cmp_ge_u32 s38, 8
    s_cbranch_scc1 P1_V
    v_and_b32 v14, 1, v13
    v_lshl_add_u32 v12, v14, 4, v12
    v_lshrrev_b32 v14, 1, v13
    v_lshl_add_u32 v{WA}, v14, 3, v12
    s_cmp_lt_u32 s38, 4
    s_cselect_b32 s50, {f2u(QSCALE):#x}, 1.0
    s_mov_b32 s51, s50
    s_cselect_b32 s52, {WS_Q:#x}, {WS_K:#x}
    s_add_u32 s55, s55, s52
    s_add_u32 s56, s56, s52
    v_lshlrev_b32 v10, 4, v1
    v_lshlrev_b32 v11, 3, v9
    v_mad_u32_u24 v11, v2, s57, v11
    s_add_u32 s60, s55, s58
    s_add_u32 s61, s56, s58
    """)
    consumer_loop(A, "QK", "P1_QK_LOOP")
    A.c("QK epilogue: block [head][T]: main 1KB lane-linear, extras [tok][8B] at +1024")
    tmp = 20
    def nxt():
        nonlocal tmp
        d = tmp; tmp = 20 + (tmp - 20 + 4) % 28
        return d
    for rt in range(2):
        for tt in range(2):
            for hp in range(2):
                A(f"s_add_u32 s59, s{60+rt}, {(tt+4*hp)*VHEAD:#x}")
                r0 = acc(rt, tt) + 8 * hp
                d = nxt()
                for i in range(4): A(f"v_pk_mul_f32 {vr(r0+2*i,2)}, {vr(r0+2*i,2)}, s[50:51]")
                for i in range(4): A(f"v_cvt_pk_bf16_f32 v{d+i}, v{r0+2*i}, v{r0+2*i+1}")
                A(f"buffer_store_dwordx4 {vr(d,4)}, v10, s[28:31], s59 offen {ST}")
    for a in range(4):
        A(f"s_add_u32 s59, s55, {2*a*VHEAD:#x}")
        d = nxt()
        r0 = ACCE + 4 * a
        for i in range(2): A(f"v_pk_mul_f32 {vr(r0+2*i,2)}, {vr(r0+2*i,2)}, s[50:51]")
        for i in range(2): A(f"v_cvt_pk_bf16_f32 v{d+i}, v{r0+2*i}, v{r0+2*i+1}")
        A(f"buffer_store_dwordx2 {vr(d,2)}, v11, s[28:31], s59 offen offset:1024 {ST}")
    done("qk")
    A("P1_V:")
    A(f"""
    v_lshl_add_u32 v{WA}, v13, 3, v12
    s_add_u32 s55, s55, {WS_V:#x}
    s_add_u32 s56, s56, {WS_V:#x}
    s_add_u32 s60, s55, s58
    s_add_u32 s61, s56, s58
    s_mov_b32 s52, {4*VHEAD}
    v_and_b32 v10, 15, v1
    v_lshlrev_b32 v10, 4, v10
    v_lshl_add_u32 v10, v2, 8, v10
    v_mad_u32_u24 v10, v14, s52, v10
    v_lshlrev_b32 v11, 4, v13
    v_lshl_add_u32 v11, v2, 6, v11
    v_lshrrev_b32 v12, 2, v1
    v_and_b32 v12, 7, v12
    v_mad_u32_u24 v11, v12, s57, v11
    """)
    consumer_loop(A, "V", "P1_V_LOOP")
    A.c("V epilogue: block per (head,T,f) = 640B: [hh0 d0-15][hh1 d0-15][hh0 d16-19][hh1 d16-19]")
    for rt in range(2):
        for tt in range(2):
            A(f"s_add_u32 s59, s{60+rt}, {tt*VHEAD:#x}")
            for f in range(2):
                r0 = acc(rt, tt) + 8 * f
                d = nxt()
                for i in range(4): A(f"v_cvt_pk_bf16_f32 v{d+i}, v{r0+2*i}, v{r0+2*i+1}")
                A(f"buffer_store_dwordx4 {vr(d,4)}, v10, s[28:31], s59 offen offset:{f*640} {ST}")
    for f in range(2):
        r0 = ACCE + 8 * f
        d = nxt()
        for i in range(4): A(f"v_cvt_pk_bf16_f32 v{d+i}, v{r0+2*i}, v{r0+2*i+1}")
        A(f"buffer_store_dwordx4 {vr(d,4)}, v11, s[28:31], s55 offen offset:{512+f*640} {ST}")
    done("v")
    A("P1_AUX:")
    A(f"""
    s_sub_u32 s40, s40, 24
    s_lshl_b32 s40, s40, 3
    s_add_u32 s40, s40, s39
    v_lshlrev_b32 v3, 4, v1
    v_lshlrev_b32 v4, 2, v1
    v_and_b32 v5, 15, v1
    v_lshlrev_b32 v5, 5, v5
    v_lshrrev_b32 v6, 4, v1
    s_mul_i32 s41, s40, 40960
    s_mul_i32 s42, s36, 10240
    s_add_u32 s41, s41, s42
    s_lshl_b32 s58, s40, 2
    s_add_u32 s58, s58, s36
    s_waitcnt lgkmcnt(0)
    """)
    srd(A, 20, 4, 2048 * 1280)
    srd(A, 24, 18, 1280)
    srd(A, 28, 10, WS_SIZE)
    A.c("clear this workgroup's 1KB share of the hand-off flags")
    A(f"""
    v_mov_b32 v152, 0
    s_lshl_b32 s57, s58, 8
    s_add_u32 s57, s57, {WS_F:#x}
    buffer_store_dword v152, v4, s[28:31], s57 offen {ST}
    """)
    for g in range(3):
        A(f"s_add_u32 m0, s42, {4096*g}")
        A(f"s_add_u32 s43, s41, {4096*g}")
        for i in range(4 if g < 2 else 2): A(f"buffer_load_dwordx4 v3, s[20:23], s43 offen offset:{i*1024} lds")
    A("s_mov_b32 m0, 40960")
    A("s_nop 0")
    A("buffer_load_dwordx4 v3, s[24:27], 0 offen lds")
    A("buffer_load_dwordx4 v3, s[24:27], 0 offen offset:1024 lds")
    A.c("weight re-layout: unit U = 4a+w + 256n (U < 680): (4 column tiles = 128 columns, s); lane = 2 columns, 16 k rows")
    A("s_mov_b32 s35, 0x00020000")
    for n in range(3):
        A(f"""
        s_add_u32 s59, s58, {256*n}
        s_min_u32 s59, s59, 679
        s_cmp_lt_u32 s59, 480
        s_cselect_b32 s32, s16, s8
        s_cselect_b32 s33, s17, s9
        s_mov_b32 s34, {640*1280}
        s_cmov_b32 s34, {1536*1280}
        s_cselect_b32 s60, 0, 480
        s_cselect_b32 s46, 96, 40
        s_mov_b32 s62, {(1<<32)//40+1:#x}
        s_cmov_b32 s62, {(1<<32)//96+1:#x}
        s_cselect_b32 s67, 16, 20
        s_cselect_b32 s50, 8, 4
        s_cselect_b32 s51, 4, 8
        s_cselect_b32 s52, 1000, 32
        s_mov_b32 s47, {WS_WO:#x}
        s_cmov_b32 s47, {WS_WD:#x}
        s_sub_u32 s60, s59, s60
        s_mul_hi_u32 s63, s60, s62
        s_mul_i32 s61, s63, s46
        s_sub_u32 s60, s60, s61
        s_lshl_b32 s48, s61, 2
        s_add_u32 s48, s48, s60
        s_lshl_b32 s48, s48, 10
        s_add_u32 s{64+n}, s48, s47
        s_lshl_b32 s{68+n}, s46, 10
        s_mul_i32 s61, s60, s67
        s_mul_i32 s53, s60, 80
        s_sub_u32 s53, s53, {32*80-16}
        s_cmp_ge_u32 s60, s52
        s_cselect_b32 s61, s53, s61
        s_cselect_b32 s50, 40, s50
        s_cselect_b32 s51, 20, s51
        s_mul_i32 s60, s61, 1280
        s_lshl_b32 s63, s63, 8
        s_add_u32 s60, s60, s63
        s_mul_i32 s51, s51, 1280
        s_mul_i32 s50, s50, 1280
        s_add_u32 s61, s60, s51
        s_add_u32 s62, s60, s50
        s_add_u32 s63, s62, s51
        """)
        for kh in range(2):
            for j in range(8):
                A(f"buffer_load_dword v{16 + 16*n + 8*kh + j}, v4, s[32:35], s{60 + 2 * kh + j // 4} offen offset:{(j % 4) * 1280}")
    A.c("gate: thread = (row = tid/8, part = tid%8), 80 elements each")
    A(f"""
    v_lshrrev_b32 v10, 3, v0
    v_and_b32 v11, 7, v0
    v_mul_u32_u24 v12, 160, v11
    v_mul_u32_u24 v13, 1280, v10
    v_add_u32 v13, v13, v12
    v_add_u32 v12, 40960, v12
    s_waitcnt vmcnt(48)
    s_barrier
    """)
    for i in range(10):
        A(f"ds_read_b128 {vr(64+4*i,4)}, v13 offset:{16*i}")
        A(f"ds_read_b128 {vr(104+4*i,4)}, v12 offset:{16*i}")
    A("v_mov_b32 v144, 0")
    A("v_mov_b32 v145, 0")
    A("s_waitcnt lgkmcnt(0)")
    for i in range(40): A(f"v_dot2_f32_bf16 v{144+(i&1)}, v{64+i}, v{104+i}, v{144+(i&1)}")
    A("s_nop 2")
    A("v_add_f32 v144, v144, v145")
    for m in ("quad_perm:[1,0,3,2]", "quad_perm:[2,3,0,1]", "row_half_mirror"):
        A("s_nop 1")
        A(f"v_add_f32_dpp v144, v144, v144 {m} row_mask:0xf bank_mask:0xf")
    A(f"""
    v_cvt_pk_bf16_f32 v144, v144, v144
    v_and_b32 v144, 0xffff0000, v144
    v_mul_f32 v144, {f2u(-LOG2E):#x}, v144
    v_exp_f32 v144, v144
    s_nop 0
    v_add_f32 v144, 1.0, v144
    v_rcp_f32 v144, v144
    s_nop 0
    v_cvt_pk_bf16_f32 v144, v144, v144
    v_and_b32 v144, 0xffff0000, v144
    v_sub_f32 v145, 1.0, v144
    v_cvt_pk_bf16_f32 v145, v145, v145
    v_and_b32 v145, 0xffff0000, v145
    s_lshl_b32 s54, s40, 7
    s_add_u32 s54, s54, {WS_G:#x}
    s_add_u32 s55, s54, 8192
    v_lshlrev_b32 v146, 2, v10
    v_cmp_ne_u32 vcc, 0, v11
    v_mov_b32 v147, 0x7f000000
    s_mov_b32 s52, 0x05040100
    v_cndmask_b32 v146, v146, v147, vcc
    v_mov_b32 v148, 0x3f803f80
    v_mov_b32 v149, 0x3f803f80
    v_mov_b32 v150, 0x3f803f80
    v_mov_b32 v151, 0x3f803f80
    s_lshl_b32 s56, s58, 10
    s_add_u32 s56, s56, {WS_ONES:#x}
    s_cmp_lt_u32 s58, 8
    s_cselect_b32 s56, s56, 0x7f000000
    s_mov_b32 s53, 0x07060302
    buffer_store_dword v144, v146, s[28:31], s54 offen {ST}
    buffer_store_dword v145, v146, s[28:31], s55 offen {ST}
    buffer_store_dwordx4 v[148:151], v3, s[28:31], s56 offen {ST}
    s_waitcnt vmcnt(3)
    """)
    A.c("transpose through LDS so that every store writes whole lines")
    A(f"""
    s_mul_i32 s57, s36, 12288
    s_add_u32 s57, s57, 45056
    v_lshl_add_u32 v12, v6, 10, v5
    v_add_u32 v12, s57, v12
    v_add_u32 v13, s57, v3
    """)
    for n in range(3):
        for kh in range(2):
            b = 16 + 16 * n + 8 * kh
            d = 64 + 16 * n + 8 * kh
            for i in range(4):
                A(f"v_perm_b32 v{d+i}, v{b+2*i+1}, v{b+2*i}, s52")
                A(f"v_perm_b32 v{d+4+i}, v{b+2*i+1}, v{b+2*i}, s53")
            A(f"ds_write_b128 v12, {vr(d,4)} offset:{n*4096+kh*512}")
            A(f"ds_write_b128 v12, {vr(d+4,4)} offset:{n*4096+kh*512+16}")
    A("s_waitcnt lgkmcnt(0)")
    for n in range(3):
        for c in range(4):
            A(f"ds_read_b128 {vr(16+16*n+4*c,4)}, v13 offset:{n*4096+c*1024}")
    for n in range(3):
        A(f"s_waitcnt lgkmcnt({8-4*n})")
        for c in range(4):
            A(f"buffer_store_dwordx4 {vr(16+16*n+4*c,4)}, v3, s[28:31], s{64+n} offen {ST}")
            if c < 3: A(f"s_add_u32 s{64+n}, s{64+n}, s{68+n}")
    mst(A, "p1b0"); mst(A, "p1end")
    done("aux")

def touch_gu(A):
    A(f"""
    s_mov_b32 s34, {640*3072}
    s_mov_b32 s32, s12
    s_mov_b32 s33, s13
    s_lshr_b32 s57, s40, 3
    s_mul_i32 s57, s57, 80
    s_mul_i32 s59, s36, 20
    s_add_u32 s57, s57, s59
    s_mul_i32 s57, s57, 3072
    s_and_b32 s59, s39, 3
    s_mul_i32 s59, s59, 768
    s_add_u32 s57, s57, s59
    """)
    for i in range(15):
        A(f"""
        v_add_u32 v152, {64*i}, v1
        v_mul_u32_u24 v153, 1366, v152
        v_lshrrev_b32 v153, 16, v153
        v_mul_u32_u24 v154, 48, v153
        v_sub_u32 v154, v152, v154
        v_mul_u32_u24 v153, 3072, v153
        v_lshl_add_u32 v{156+i}, v154, 4, v153
        buffer_load_dwordx4 {ar(4*i,4)}, v{156+i}, s[32:35], s57 offen
        """)
    A("s_mov_b32 s32, s14")
    A("s_mov_b32 s33, s15")
    for i in range(15):
        A(f"buffer_load_dwordx4 {ar(60+4*i,4)}, v{156+i}, s[32:35], s57 offen")
```

```python
from common import *
XB = 16384
UPOFF = 12288 + 32
SZ = XB + 2 * 12288 + 64
O_LDS = 3 * SZ
P2_LDS = O_LDS + 4 * 6144
def launch(): return f"; @launch kernel=k2_kernel grid=(256,1,1) block=(256,1,1) lds={P2_LDS}"
def ar(a, n=1): return f"a{a}" if n == 1 else f"a[{a}:{a+n-1}]"
QM = [16, 20, 24, 28]; QE = [32, 34, 36, 38]
S = [40, 56]; P = [72, 80]
def KB(j): return 88 + 4 * (j % 3)
def EB(j): return 100 + 2 * (j % 3)
def VB(j): return 108 + 8 * (j % 3)
VK, VE = 106, 107
DX = 132
DW = 136
XA = 142
WA = 146
GACC = 148
NARCH = 244
def GA(rt, t): return GACC + 16 * (3 * rt + t)
def OA(q): return 16 * q
def XF(buf, rt): return 64 + 4 * (2 * buf + rt)
def WF(buf, t): return 80 + 4 * (3 * buf + t)
TD = 104
NACC = 128
ST_ = 16
VT2 = 147
STH = os.environ.get('K2STH', 'sc1')
STO = os.environ.get('K2STO', 'sc1')
TOUCH = int(os.environ.get('K2TOUCH', '0'))
TPAT = {2: [0], 5: [1], 10: [2], 11: [3, 4, 5]}
SK, SV, SX, SW = 40, 44, 48, 52
PRE = 8
X = os.environ.get("K2X", "")

def qk_mfmas(u):
    j, q = divmod(u, 4)
    Sd = S[u % 2]
    return [f"v_mfma_f32_32x32x16_bf16 {vr(Sd,16)}, {vr(KB(j),4)}, {vr(QM[q],4)}, 0",
            f"v_mfma_f32_32x32x8_bf16 {vr(Sd,16)}, {vr(EB(j),2)}, {vr(QE[q],2)}, {vr(Sd,16)}"]
def pv_mfmas(u):
    j, q = divmod(u, 4)
    Pb = P[u % 2]
    if u < 0: return ["s_nop 0", "s_nop 0"]
    c0 = "0" if u < 4 else ar(OA(q),16)
    return [f"v_mfma_f32_32x32x16_bf16 {ar(OA(q),16)}, {vr(VB(j),4)}, {vr(Pb,4)}, {c0}",
            f"v_mfma_f32_32x32x16_bf16 {ar(OA(q),16)}, {vr(VB(j)+4,4)}, {vr(Pb+4,4)}, {ar(OA(q),16)}"]
def g_mfmas(u):
    if u < PRE: return []
    r = (u - PRE) % 12
    ks, t = divmod(r, 3)
    buf = ks & 1
    return [f"v_mfma_f32_32x32x16_bf16 {vr(GA(rt,t),16)}, {ar(WF(buf,t),4)}, {ar(XF(buf,rt),4)}, {vr(GA(rt,t),16)}" for rt in range(2)]
def g_reads(ks):
    buf = ks & 1
    R = [f"ds_read_b128 {ar(XF(buf,0),4)}, v{XA+ks}"]
    W = [f"ds_read_b64_tr_b16 {ar(WF(buf,t)+2*j2,2)}, v{WA} offset:{ks*3072 + j2*768 + t*32}" for t in range(3) for j2 in range(2)]
    return [R[0], f"ds_read_b128 {ar(XF(buf,1),4)}, v{XA+ks} offset:4096"] + W

def toff(j): return ((j - 2) % 3) * 1280
def ldK(j): return ("K", j, f"buffer_load_dwordx4 {vr(KB(j),4)}, v{VK}, {sr(SK,4)}, 0 offen offset:{toff(j)} sc1")
def ldE(j): return ("E", j, f"buffer_load_dwordx2 {vr(EB(j),2)}, v{VE}, {sr(SK,4)}, 0 offen offset:{toff(j) + 1024} sc1")
def ldV(j, f): return ("V%d" % f, j, f"buffer_load_dwordx4 {vr(VB(j) + 4 * f,4)}, v4, {sr(SV,4)}, 0 offen offset:{toff(j) + f * 640} sc1")
def dmaX(c, i): return ("DX%d" % i, c, f"buffer_load_dwordx4 v{DX+i}, {sr(SX,4)}, 0 offen offset:{i*1024} lds")
def dmaW(c, i): return ("DW%d" % i, c, f"buffer_load_dwordx4 v{DW+i}, {sr(SW,4)}, 0 offen offset:{(i%4)*1024} lds")

def att_ops(u):
    j, q = divmod(u, 4)
    if q == 3: return [ldK(j + 3), ldE(j + 3)]
    if q == 1: return [ldV(j + 2, 0), ldV(j + 2, 1)]
    return []
def dma(c, i): return dmaX(c, i) if i < 4 else dmaW(c, i - 4)
PAT = {0: (3, 0), 1: (4, 1), 2: (1, 1), 3: (3, 2), 4: (2, 1), 5: (3, 1), 6: (2, 1), 7: (4, 1), 8: (2, 1), 9: (4, 1), 10: (2, 0), 11: (2, 0)}
def barrier_slot(u): return u >= PRE - 3 and (u - PRE + 3) % 12 == 0
def slot_ops(u):
    if 0 <= u < PRE: return [o for o in prefix_ops(u) if not ("nodma" in X and o[0][0] == "D") and not ("nods" in X and o[0] == "ds")]
    a = att_ops(u); ds = []; dm = []
    v = u - PRE + 3
    if v >= 0:
        c, r = divmod(v, 12)
        ks = r // 3
        lo = sum(PAT[x][0] for x in range(3 * ks, r))
        ds = [("ds", 0, t) for t in g_reads(ks)[lo:lo + PAT[r][0]]]
        lo = sum(PAT[x][1] for x in range(r))
        dm = [dma(c + 2, i) for i in range(lo, lo + PAT[r][1])]
    if "nodma" in X: dm = []
    if "nods" in X: ds = []
    t = []
    if TOUCH and v >= 0:
        t = [("T%d" % i, v // 12, f"buffer_load_dwordx4 {ar(TD+4*i,4)}, v{3 if i < 4 else VT2}, {sr(ST_,4)}, 0 offen offset:{(i%4)*1024}") for i in TPAT.get(v % 12, [])]
    return ds + a[:1] + dm + a[1:] + t
def posts_of(u):
    return [0, 2, 3, 4, 5] if u >= PRE else [0, 2, 3]
def placement(u):
    ops = slot_ops(u); posts = posts_of(u)
    real = [o for o in ops if o[0] != "sc"]
    n, m = len(real), len(posts)
    cnt = [n // m + (1 if i < n % m else 0) for i in range(m)] if n > m else [1 if i < n else 0 for i in range(m)]
    place = {p: [] for p in posts}
    i = 0; used = 0
    for o in ops:
        while i < m - 1 and used >= cnt[i]: i += 1; used = 0
        place[posts[i]].append(o)
        if o[0] != "sc": used += 1
    return place
def vm_wait(u, pro, shift):
    uu = u + shift
    j, q = divmod(uu + 1, 4)
    nd = []
    if q == 3: nd += [("K", j + 1), ("E", j + 1)]
    if q == 1: nd += [("V0", j), ("V1", j)]
    if barrier_slot(uu + 1):
        c = (uu + 1 - PRE + 3) // 12
        if "nodma" not in X: nd += [("DX%d" % i, c) for i in range(4)] + [("DW%d" % i, c) for i in range(6)]
    if not nd: return None
    seq = list(pro)
    for x in range(0, uu + 1):
        pl = placement(x)
        for p in posts_of(x):
            if x == uu and p == posts_of(x)[-1]: break
            for o in pl[p]:
                if o[0] not in ("ds", "sc"): seq.append((o[0], o[1]))
    last = max(seq.index(n) for n in nd)
    return len(seq) - 1 - last

G6 = [("e", 0, 3), ("e", 3, 7), ("e", 7, 9, "c", 0, 2), ("e", 9, 12, "c", 2, 3), ("e", 12, 14, "c", 3, 5), ("e", 14, 16, "c", 5, 8)]
G4 = [("e", 0, 4, "c", 0, 1), ("e", 4, 8, "c", 1, 3), ("e", 8, 12, "c", 3, 5), ("e", 12, 16, "c", 5, 8)]
def emit_slot(A, u, scal, pre_valu, wn):
    Sc, Pc = S[u % 2], P[u % 2]
    qk = qk_mfmas(u + 1); pv = pv_mfmas(u - 1); g = g_mfmas(u)
    mf = [qk[0], qk[1], pv[0]] + (g[:1]) + [pv[1]] + g[1:]
    gaps = G6 if g else G4
    place = placement(u); posts = posts_of(u)
    for l in pre_valu: A(l)
    for i, m in enumerate(mf):
        if not ("nog" in X and m in g): A(m)
        if i in place:
            if i == posts[-1] and wn is not None and "novm" not in X: A(f"s_waitcnt vmcnt({wn})")
            for l in scal.get(i, []): A(l)
            for o in place[i]:
                if u < PRE and m0_for(o): A(m0_for(o)); A("s_nop 0")
                A(o[2])
                if o[0] == "E" and o[1] >= 2 and (o[1] - 2) % 3 == 2:
                    A(f"v_add_u32 v{VK}, s74, v{VK}"); A(f"v_add_u32 v{VE}, s74, v{VE}")
                if o[0] == "V1" and o[1] >= 2 and (o[1] - 2) % 3 == 2: A("v_mad_i32_i24 v4, v5, s74, v4")
        gp = gaps[i]
        for e in range(gp[1], gp[2]): A(f"v_exp_f32 v{Sc+e}, v{Sc+e}")
        if len(gp) > 3:
            for c in range(gp[4], gp[5]): A(f"v_cvt_pk_bf16_f32 v{Pc+c}, v{Sc+2*c}, v{Sc+2*c+1}")

ADV = ["s_add_u32 s60, s60, 1", "s_cmp_eq_u32 s60, 10", "s_cselect_b32 s60, 0, s60", "s_cselect_b32 s64, s66, s67",
       "s_cselect_b32 s65, s68, s69", "s_cselect_b32 s70, -1, 0",
       f"s_add_u32 s{SX}, s{SX}, s64", f"s_addc_u32 s{SX+1}, s{SX+1}, s70",
       f"s_add_u32 s{SW}, s{SW}, s65", f"s_addc_u32 s{SW+1}, s{SW+1}, s70"]
KROT = int(os.environ.get("K2KROT", "5"))
KADV = ["s_add_u32 s76, s76, 1", "s_cmp_eq_u32 s76, 10", "s_cselect_b32 s76, 0, s76", "s_cselect_b32 s74, s78, s79",
        "s_cmp_ge_u32 s5, 9", "s_cselect_b32 s74, 0x400000, s74"]
def m0_for(op):
    return {"DX0": "s_add_u32 m0, s58, s61", "DW0": "s_add_u32 m0, s58, s62", "DW4": "s_add_u32 m0, s58, s63"}.get(op[0])


def prefix_ops(u):
    att = att_ops(u)
    K1 = ("K", 1, f"buffer_load_dwordx4 {vr(KB(1),4)}, v3, {sr(SK,4)}, s77 offen offset:1280 sc1")
    E1 = ("E", 1, f"buffer_load_dwordx2 {vr(EB(1),2)}, v7, {sr(SK,4)}, s77 offen offset:2304 sc1")
    V1 = [("V%d" % f, 1, f"buffer_load_dwordx4 {vr(VB(1)+4*f,4)}, v10, {sr(SV,4)}, 0 offen offset:{1280+f*640} sc1") for f in range(2)]
    g = [("g", 0, "buffer_load_dword v14, v13, s[28:31], s23 offen sc1"), ("g", 1, "buffer_load_dword v15, v13, s[28:31], s23 offen offset:128 sc1")]
    R = [("ds", 0, t) for t in g_reads(0)]
    D = lambda c, lo, hi: [dma(c, i) for i in range(lo, hi)]
    T = {0: [K1, E1] + V1,
         1: att + D(1, 0, 2),
         2: [ldK(2), ldE(2)] + D(1, 2, 4),
         3: att + D(1, 4, 6),
         4: D(1, 6, 9),
         5: R[0:3] + att,
         6: R[3:7] + D(1, 9, 10) + g,
         7: R[7:8] + att + [("sc", 0, l) for l in ADV + [f"s_mov_b32 s58, {2*SZ}"]] + D(2, 0, 2)}
    return T[u]

def gen_p2_setup(A):
    A(f"""
    s_load_dwordx2 s[10:11], s[0:1], 80
    s_load_dwordx2 s[4:5], s[0:1], 0
    s_load_dwordx4 s[12:15], s[0:1], 32
    s_load_dwordx2 s[74:75], s[0:1], 72
    v_and_b32 v1, 63, v0
    s_and_b32 s6, s2, 7
    s_lshr_b32 s7, s2, 3
    s_and_b32 s37, s6, 3
    s_lshl_b32 s37, s37, 3
    s_lshr_b32 s9, s7, 2
    s_add_u32 s37, s37, s9
    s_lshr_b32 s38, s6, 2
    s_lshl_b32 s38, s38, 2
    s_and_b32 s76, s7, 3
    s_add_u32 s32, s38, s76
    s_lshl_b32 s38, s32, 3
    s_and_b32 s8, s36, 1
    s_lshl_b32 s9, s8, 2
    s_add_u32 s38, s38, s9
    s_and_b32 s9, s36, 2
    s_add_u32 s33, s38, s9
    s_xor_b32 s9, s9, 2
    s_add_u32 s34, s38, s9
    s_lshr_b32 s35, s36, 1
    v_lshrrev_b32 v2, 5, v1
    v_lshlrev_b32 v3, 4, v1
    v_and_b32 v6, 31, v1
    v_lshlrev_b32 v7, 3, v6
    s_mul_i32 s26, s37, {VHEAD}
    s_mul_i32 s17, s35, 40960
    s_add_u32 s19, s26, s17
    s_add_u32 s19, s19, {WS_K:#x}
    s_mul_i32 s20, s33, 1280
    s_add_u32 s20, s20, s26
    s_mul_i32 s21, s34, 1280
    s_add_u32 s21, s21, s26
    s_mov_b32 s77, 38400
    s_mul_i32 s76, s76, {KROT}
    s_lshr_b32 s76, s76, 1
    """)
    A.c("poll addresses for the first hand-off: lane -> producer id (g + 4*((l>>3)&1)) + 8*((l&7) + 8*(l>>4)), lanes >= 48 repeat")
    A(f"""
    s_and_b32 s9, s6, 3
    v_min_u32 v16, 47, v1
    v_lshrrev_b32 v17, 4, v16
    v_and_b32 v18, 7, v16
    v_lshl_add_u32 v17, v17, 3, v18
    v_lshrrev_b32 v18, 3, v16
    v_and_b32 v18, 1, v18
    v_lshlrev_b32 v18, 2, v18
    v_lshl_add_u32 v16, v17, 3, v18
    v_add_u32 v16, s9, v16
    v_lshlrev_b32 v16, 7, v16
    s_mul_i32 s22, s76, 3840
    s_add_u32 s16, s26, 8192
    s_add_u32 s18, s16, s17
    s_mov_b32 s27, {WS_F:#x}
    """)
    A.c("V lane offsets (from the ones block): d<16: hh*256+d*16 ; d<20: 512+hh*64+(d-16)*16 ; d==20: ones ; else OOB")
    A(f"""
    v_lshlrev_b32 v11, 4, v6
    v_lshl_add_u32 v4, v2, 8, v11
    v_lshl_add_u32 v5, v2, 6, v11
    v_add_u32 v5, 256, v5
    v_cmp_gt_u32 vcc, 16, v6
    s_add_u32 s18, s18, 40960
    s_nop 0
    v_cndmask_b32 v4, v5, v4, vcc
    v_add_u32 v9, s16, v4
    v_add_u32 v4, s17, v9
    v_mov_b32 v5, 0x7f000000
    v_cmp_gt_u32 vcc, 20, v6
    v_add_u32 v{VK}, s22, v3
    v_add_u32 v{VE}, s22, v7
    v_cndmask_b32 v4, v5, v4, vcc
    v_cndmask_b32 v9, v5, v9, vcc
    v_cndmask_b32 v5, 0, 1, vcc
    v_cmp_eq_u32 vcc, 20, v6
    v_lshlrev_b32 v13, 2, v6
    s_nop 0
    v_cndmask_b32 v4, v4, 0, vcc
    v_cndmask_b32 v9, v9, 0, vcc
    v_mad_u32_u24 v10, v5, s77, v4
    v_mad_u32_u24 v4, v5, s22, v4
    """)
    A.c("GEGLU tile: rb = 8*(x>>2) + (m&7), fg = 4*(x&3) + (m>>3); chunk rotation s60")
    A(f"""
    s_lshr_b32 s24, s6, 2
    s_lshl_b32 s24, s24, 3
    s_and_b32 s9, s7, 7
    s_add_u32 s24, s24, s9
    s_and_b32 s25, s6, 3
    s_lshl_b32 s25, s25, 2
    s_lshr_b32 s16, s7, 3
    s_add_u32 s25, s25, s16
    s_mul_i32 s9, s9, 5
    s_mul_i32 s16, s16, 10
    s_add_u32 s9, s9, s16
    s_lshr_b32 s9, s9, 2
    s_cmp_ge_u32 s9, 10
    s_cselect_b32 s16, 10, 0
    s_sub_u32 s60, s9, s16
    s_lshl_b32 s23, s33, 7
    s_add_u32 s23, s23, {WS_G:#x}
    s_mul_i32 s16, s24, {128*1280}
    s_lshl_b32 s9, s60, 7
    s_add_u32 s16, s16, s9
    s_mul_i32 s17, s25, 192
    s_mul_i32 s9, s60, {64*3072}
    s_add_u32 s17, s17, s9
    s_lshl_b32 s61, s36, 12
    s_mul_i32 s62, s35, {UPOFF}
    s_mul_i32 s9, s8, 6144
    s_add_u32 s62, s62, s9
    s_add_u32 s62, s62, {XB}
    s_add_u32 s63, s62, 4096
    s_mov_b32 s66, {(-9*128) & 0xffffffff:#x}
    s_movk_i32 s67, 128
    s_mov_b32 s68, {(-9*64*3072) & 0xffffffff:#x}
    s_mov_b32 s69, {64*3072}
    s_mov_b32 s58, 0
    s_mov_b32 s57, 0
    s_mov_b32 s71, {(-2*SZ) & 0xffffffff:#x}
    s_mov_b32 s72, {SZ}
    s_mov_b32 s78, {(-9*3840) & 0xffffffff:#x}
    s_movk_i32 s79, 3840
    """)
    A.c("DMA source offsets: x rows 32w+8i+(l>>3), piece (l&7)^((row>>1)&7) ; W pieces P=(6*(w&1)+i)*64+l -> k=P/12, c=P%12")
    A(f"""
    v_lshrrev_b32 v8, 3, v1
    s_lshl_b32 s9, s36, 5
    v_add_u32 v8, s9, v8
    v_mul_u32_u24 v8, 1280, v8
    v_and_b32 v11, 7, v1
    v_lshrrev_b32 v12, 4, v1
    v_xor_b32 v11, v11, v12
    v_lshl_add_u32 v{DX}, v11, 4, v8
    v_xor_b32 v8, 64, v{DX}
    v_add_u32 v{DX+1}, {10240-1024}, v8
    v_add_u32 v{DX+2}, {2*(10240-1024)}, v{DX}
    v_add_u32 v{DX+3}, {3*(10240-1024)}, v8
    s_mul_i32 s9, s8, 384
    v_add_u32 v8, s9, v1
    """)
    for i in range(6):
        A(f"""
        v_mul_u32_u24 v11, 5462, v8
        v_lshrrev_b32 v11, 16, v11
        v_mul_u32_u24 v12, 12, v11
        v_sub_u32 v12, v8, v12
        v_mul_u32_u24 v11, 3072, v11
        v_lshl_add_u32 v{DW+i}, v12, 4, v11
        """)
        if i % 4: A(f"v_subrev_u32 v{DW+i}, {(i%4)*1024}, v{DW+i}")
        if i < 5: A("v_add_u32 v8, 64, v8")
    A("s_waitcnt lgkmcnt(0)")
    A("""
    s_cmp_eq_u32 s35, 0
    s_cselect_b32 s12, s12, s14
    s_cselect_b32 s13, s13, s15
    """)
    srd(A, 28, 10, WS_SIZE)
    srd_off(A, SK, 10, "s19", 40960)
    srd_off(A, SV, 10, f"{WS_ONES:#x}", "s18")
    srd_off(A, SX, 4, "s16", 2048 * 1280)
    srd_off(A, SW, 12, "s17", 640 * 3072)

def gen_p2_main(A):
    A.c("GEGLU chunk 0, then the rest of the set-up, then wait for phase 1")
    for i in range(10):
        if m0_for(dma(0, i)): A(m0_for(dma(0, i))); A("s_nop 0")
        A(dma(0, i)[2])
    for l in ADV: A(l)
    A(f"s_mov_b32 s58, {SZ}")
    A(f"""
    v_lshrrev_b32 v8, 1, v6
    v_and_b32 v8, 7, v8
    v_xor_b32 v8, v8, v2
    s_lshl_b32 s9, s8, 13
    v_lshlrev_b32 v11, 7, v6
    v_add_u32 v11, s9, v11
    """)
    for ks in range(4):
        A(f"v_xor_b32 v12, {2*ks}, v8")
        A(f"v_lshl_add_u32 v{XA+ks}, v12, 4, v11")
    A(f"""
    v_lshrrev_b32 v12, 2, v1
    v_and_b32 v12, 3, v12
    v_lshl_add_u32 v12, v2, 3, v12
    v_mul_u32_u24 v12, 192, v12
    v_lshrrev_b32 v8, 4, v1
    v_and_b32 v8, 1, v8
    v_mul_u32_u24 v8, {UPOFF}, v8
    v_add_u32 v12, v12, v8
    v_and_b32 v8, 1, v1
    v_lshl_add_u32 v12, v8, 4, v12
    v_and_b32 v8, 2, v1
    v_lshl_add_u32 v12, v8, 2, v12
    s_mul_i32 s9, s35, 96
    s_add_u32 s9, s9, {XB}
    v_add_u32 v{WA}, s9, v12
    s_mul_i32 s9, s36, 6144
    s_add_u32 s9, s9, {O_LDS}
    v_add_u32 v11, s9, v3
    s_xor_b32 s9, s36, 2
    s_mul_i32 s9, s9, 6144
    s_add_u32 s9, s9, {O_LDS}
    v_add_u32 v12, s9, v3
    """)
    for i in range(48): A(f"v_pk_mov_b32 {vr(GACC+2*i,2)}, 0, 0")
    poll(A, "SYNC1", "buffer_load_dword v17, v16, s[28:31], s27 offen sc1", 17, "1")
    mst(A, "s1")
    for l in KADV[:4]: A(l)
    A(f"""
    buffer_load_dwordx4 v[16:19], v3, s[28:31], s20 offen sc1
    buffer_load_dwordx2 v[40:41], v7, s[28:31], s20 offen offset:1024 sc1
    buffer_load_dwordx4 {vr(KB(0),4)}, v3, {sr(SK,4)}, s77 offen sc1
    buffer_load_dwordx2 {vr(EB(0),2)}, v7, {sr(SK,4)}, s77 offen offset:1024 sc1
    buffer_load_dwordx4 v[20:23], v3, s[28:31], s20 offen offset:1280 sc1
    buffer_load_dwordx2 v[42:43], v7, s[28:31], s20 offen offset:2304 sc1
    buffer_load_dwordx4 v[24:27], v3, s[28:31], s21 offen sc1
    buffer_load_dwordx2 v[44:45], v7, s[28:31], s21 offen offset:1024 sc1
    buffer_load_dwordx4 v[28:31], v3, s[28:31], s21 offen offset:1280 sc1
    buffer_load_dwordx2 v[46:47], v7, s[28:31], s21 offen offset:2304 sc1
    """)
    pro = []
    def pl(kind, idx, text): pro.append((kind, idx)); A(text)
    for f in range(2): pl("V%d" % f, 0, f"buffer_load_dwordx4 {vr(VB(0)+4*f,4)}, v10, {sr(SV,4)}, 0 offen offset:{f*640} sc1")
    A("v_cmp_eq_u32 vcc, 0, v2")
    A(f"s_waitcnt vmcnt({len(pro)})")
    for q in range(4):
        for i in range(2):
            A(f"v_cndmask_b32 v{QE[q]+i}, 0, v{40+2*q+i}, vcc")
    A("s_nop 1")
    for m in qk_mfmas(0): A(m)
    A("s_mov_b32 s5, 0")
    A("s_nop 7")
    A("s_nop 7")
    pro_full = [dma(0, i)[:2] for i in range(10)] + [("K", 0), ("E", 0)] + pro
    def build(u0, u1, in_loop):
        pos = [(u, p) for u in range(u0, u1) for p in posts_of(u)]
        scal = {x: [] for x in pos}
        pre = {u: [] for u in range(u0, u1)}
        waits = {u: vm_wait(u, pro_full, 24 if in_loop else 0) for u in range(u0, u1)}
        busy = {(u, posts_of(u)[-1]) for u in range(u0, u1) if waits[u] is not None}
        def put(x, ins):
            scal[x].append(ins); busy.add(x)
        for u in range(u0, u1):
            if barrier_slot(u):
                put((u, 0), "s_waitcnt lgkmcnt(0)"); put((u, 0), "s_barrier" if "nobar" not in X else "s_nop 0")
                if u - PRE + 3 > 0:
                    pre[u] = [f"v_add_u32 v{XA+i}, s56, v{XA+i}" for i in range(4)] + [f"v_add_u32 v{WA}, s56, v{WA}"]
            elif u >= PRE and (u - PRE) % 3 == 0:
                put((u, 0), "s_waitcnt lgkmcnt(0)")
        if in_loop:
            for k, x in enumerate(pos):
                for o in placement(x[0])[x[1]]:
                    m = m0_for(o)
                    if m:
                        y = pos[k - 1]
                        assert k > 0 and not any(z[0][0] == "D" for z in placement(y[0])[y[1]])
                        put(y, m)
        def chain(ins, first, last):
            free = [x for x in pos if first <= x <= last and x not in busy]
            if len(free) < len(ins):
                free = sorted(free + [last] * (len(ins) - len(free)))
            for x, i in zip(free, ins): put(x, i)
        return pos, scal, pre, waits, chain
    pos, scal, pre, waits, chain = build(0, PRE, False)
    for u in range(PRE):
        emit_slot(A, u, {p: scal[(u, p)] for p in posts_of(u)}, pre[u], waits[u])
    A(".p2align 6")
    A("P2_LOOP:")
    pos, scal, pre, waits, chain = build(PRE, PRE + 12, True)
    B = PRE + 9
    chain(ADV, (PRE + 6, 5), (PRE + 8, 4))
    chain(["s_cmp_ge_u32 s5, 8", f"s_cselect_b32 s{SX+2}, 0, s{SX+2}", f"s_cselect_b32 s{SW+2}, 0, s{SW+2}"] +
          ([f"s_cselect_b32 s{ST_+2}, 6144, 0", f"s_add_u32 s{ST_}, s{ST_}, 6144", f"s_addc_u32 s{ST_+1}, s{ST_+1}, 0"] if TOUCH else []), (B, 3), (B + 1, 3))
    chain(["s_add_u32 s5, s5, 1"], (PRE, 2), (PRE, 2))
    chain(["s_mov_b32 s73, s57", f"s_add_u32 s57, s57, {SZ}", f"s_cmp_eq_u32 s57, {3*SZ}", "s_cselect_b32 s57, 0, s57", "s_cselect_b32 s56, s71, s72"] + KADV,
          (PRE + 2, 0), (PRE + 5, 2))
    scal[(B, 2)].insert(0, "s_mov_b32 s58, s73")
    chain(["s_cmp_lt_u32 s5, 10"], (PRE + 11, 3), (PRE + 11, 5))
    for u in range(PRE, PRE + 12):
        emit_slot(A, u, {p: scal[(u, p)] for p in posts_of(u)}, pre[u], waits[u])
    A("s_cbranch_scc1 P2_LOOP")
    for m in pv_mfmas(PRE + 11): A(m)
    mst(A, "p2loop")
    tail(A)

def tail(A):
    O = [88, 104]; XR = [120, 132]
    A.c("GEGLU epilogue")
    C0 = -2.0 * LOG2E * math.sqrt(2.0 / math.pi)
    C1 = C0 * 0.044715
    A(f"""
    s_mov_b32 s12, {f2u(C1):#x}
    s_mov_b32 s13, {f2u(C1):#x}
    v_mov_b32 v16, {f2u(C0):#x}
    v_mov_b32 v17, {f2u(C0):#x}
    s_lshl_b32 s14, s24, 2
    s_lshl_b32 s15, s8, 1
    s_add_u32 s14, s14, s15
    s_mul_i32 s14, s14, 96
    s_mul_i32 s15, s25, 6
    s_add_u32 s14, s14, s15
    s_mul_i32 s15, s35, 3
    s_add_u32 s14, s14, s15
    s_lshl_b32 s14, s14, 10
    s_add_u32 s14, s14, {WS_H:#x}
    s_add_u32 s15, s14, {96*1024}
    """)
    first = True
    for rt in range(2):
        for t in range(3):
            g0 = GA(rt, t); u0 = g0 + 8
            z = 24; d = 40 + 4 * (3 * rt + t)
            for p in range(4): A(f"v_pk_mul_f32 {vr(z+2*p,2)}, {vr(g0+2*p,2)}, {vr(g0+2*p,2)}")
            for p in range(4): A(f"v_pk_fma_f32 {vr(z+2*p,2)}, {vr(z+2*p,2)}, s[12:13], v[16:17]")
            for p in range(4): A(f"v_pk_mul_f32 {vr(z+2*p,2)}, {vr(z+2*p,2)}, {vr(g0+2*p,2)}")
            for i in range(8): A(f"v_exp_f32 v{z+i}, v{z+i}")
            for p in range(4): A(f"v_pk_mul_f32 {vr(u0+2*p,2)}, {vr(u0+2*p,2)}, {vr(g0+2*p,2)}")
            for p in range(4): A(f"v_pk_add_f32 {vr(z+2*p,2)}, {vr(z+2*p,2)}, 1.0 op_sel_hi:[1,0]")
            for i in range(8): A(f"v_rcp_f32 v{z+i}, v{z+i}")
            if first:
                A.c("publish the partner's O tiles while the VALU works")
                for q in range(2):
                    for a in range(3):
                        A(f"ds_write_b128 v11, {ar(OA(2+q)+4*a,4)} offset:{(3*q+a)*1024}")
                first = False
            else:
                A("s_nop 0")
            for p in range(4): A(f"v_pk_mul_f32 {vr(u0+2*p,2)}, {vr(u0+2*p,2)}, {vr(z+2*p,2)}")
            for p in range(4): A(f"v_cvt_pk_bf16_f32 v{d+p}, v{u0+2*p}, v{u0+2*p+1}")
            A(f"buffer_store_dwordx4 {vr(d,4)}, v3, s[28:31], s{14+rt} offen offset:{t*1024} {STH}")
            if rt == 0 and t == 2:
                A("s_waitcnt lgkmcnt(0)")
                A("s_barrier")
                A("s_waitcnt vmcnt(3)")
                for q in range(2):
                    for a in range(3):
                        A(f"ds_read_b128 {vr(XR[q]+4*a,4)}, v12 offset:{(3*q+a)*1024}")
    for q in range(2):
        for i in range(12): A(f"v_accvgpr_read_b32 v{O[q]+i}, a{OA(q)+i}")
    A("s_waitcnt lgkmcnt(0)")
    for q in range(2):
        for i in range(6): A(f"v_pk_add_f32 {vr(O[q]+2*i,2)}, {vr(O[q]+2*i,2)}, {vr(XR[q]+2*i,2)}")
    A("s_mov_b32 s5, 0")
    A("P2_FIN:")
    A.c("finalize: l = row 20 (reg 8 of upper lanes)")
    T = 32
    for q in range(2):
        A(f"v_mov_b32 v{T+2*q}, v{O[q]+8}")
        A(f"v_mov_b32 v{T+2*q+1}, v{O[q]+8}")
    A("s_nop 1")
    for q in range(2): A(f"v_permlane32_swap_b32 v{T+2*q}, v{T+2*q+1}")
    A("s_nop 1")
    for q in range(2):
        A(f"v_rcp_f32 v{T+2*q}, v{T+2*q+1}")
    A("v_mov_b32 v38, 0")
    for q in range(2):
        A(f"v_mul_f32 v{T+2*q}, v{T+2*q}, v{14+q}")
    for q in range(2):
        for i in range(6): A(f"v_pk_mul_f32 {vr(O[q]+2*i,2)}, {vr(O[q]+2*i,2)}, {vr(T+2*q,2)} op_sel_hi:[1,0]")
    A.c("safety check (fast path only): 2^-30 <= l <= 2^60 and all outputs finite, else redo with the true row max")
    A("v_mov_b32 v39, 0")
    for q in range(2):
        for i in range(6): A(f"v_pk_fma_f32 v[38:39], {vr(O[q]+2*i,2)}, 0, v[38:39] op_sel_hi:[1,0,1]")
    A(f"""
    v_add_f32 v38, v38, v39
    v_min_f32 v36, v33, v35
    v_max_f32 v37, v33, v35
    s_mov_b32 s16, {f2u(2.0**-30):#x}
    s_mov_b32 s17, {f2u(2.0**60):#x}
    v_cmp_le_f32 s[12:13], s16, v36
    v_cmp_ge_f32 s[14:15], s17, v37
    v_cmp_o_f32 s[16:17], v33, v35
    v_cmp_eq_f32 vcc, 0, v38
    s_and_b64 s[12:13], s[12:13], s[14:15]
    s_and_b64 s[12:13], s[12:13], s[16:17]
    s_and_b64 s[12:13], s[12:13], vcc
    s_cmp_eq_u64 s[12:13], -1
    s_cselect_b32 s12, 1, 0
    s_or_b32 s12, s12, s5
    s_cmp_eq_u32 s12, 0
    s_cbranch_scc1 P2_SLOW
    """)
    A.c("stores: O' block [T][head]: main 1KB, extras [tok][8B]")
    for q in range(2):
        for i in range(4): A(f"v_cvt_pk_bf16_f32 v{64+8*q+i}, v{O[q]+2*i}, v{O[q]+2*i+1}")
        for i in range(2): A(f"v_cvt_pk_bf16_f32 v{68+8*q+i}, v{O[q]+8+2*i}, v{O[q]+8+2*i+1}")
    A(f"""
    s_mul_i32 s12, s33, 40960
    s_mul_i32 s13, s37, 1280
    s_add_u32 s12, s12, s13
    s_add_u32 s12, s12, {WS_O:#x}
    s_add_u32 s13, s12, 40960
    v_mul_u32_u24 v80, 0x7f0000, v2
    v_lshl_add_u32 v80, v80, 8, v7
    buffer_store_dwordx4 v[64:67], v3, s[28:31], s12 offen {STO}
    buffer_store_dwordx2 v[68:69], v80, s[28:31], s12 offen offset:1024 {STO}
    buffer_store_dwordx4 v[72:75], v3, s[28:31], s13 offen {STO}
    buffer_store_dwordx2 v[76:77], v80, s[28:31], s13 offen offset:1024 {STO}
    """)
    A("s_branch P3_SETUP")

def slow(A):
    O = [88, 104]
    A("P2_SLOW:")
    K, E, V = 120, 124, 128
    SA, SB = 40, 56
    QMs = [16, 20]; QEs = [24, 26]
    A(f"""
    s_mov_b32 s5, 1
    s_waitcnt vmcnt(0)
    s_mov_b32 s{SV+2}, {8192 + 32*VHEAD}
    buffer_load_dwordx4 v[16:19], v3, s[28:31], s20 offen sc1
    buffer_load_dwordx4 v[20:23], v3, s[28:31], s20 offen offset:1280 sc1
    buffer_load_dwordx2 v[24:25], v7, s[28:31], s20 offen offset:1024 sc1
    buffer_load_dwordx2 v[26:27], v7, s[28:31], s20 offen offset:2304 sc1
    v_mov_b32 v28, 0xff800000
    v_mov_b32 v29, 0xff800000
    v_mul_u32_u24 v30, 1280, v5
    v_cmp_eq_u32 vcc, 0, v2
    s_waitcnt vmcnt(0)
    """)
    for i in range(4): A(f"v_cndmask_b32 v{24+i}, 0, v{24+i}, vcc")
    def slow_qk():
        A(f"""
        s_mul_i32 s12, s4, 1280
        s_add_u32 s12, s12, s26
        s_add_u32 s12, s12, {WS_K:#x}
        buffer_load_dwordx4 {vr(K,4)}, v3, s[28:31], s12 offen sc1
        buffer_load_dwordx2 {vr(E,2)}, v7, s[28:31], s12 offen offset:1024 sc1
        """)
    def slow_mf():
        for q, Sx in ((0, SA), (1, SB)):
            A(f"v_mfma_f32_32x32x16_bf16 {vr(Sx,16)}, {vr(K,4)}, {vr(QMs[q],4)}, 0")
            A(f"v_mfma_f32_32x32x8_bf16 {vr(Sx,16)}, {vr(E,2)}, {vr(QEs[q],2)}, {vr(Sx,16)}")
        A("s_nop 15")
    A("s_mov_b32 s4, 0")
    A("P2_SLOW1:")
    slow_qk()
    A("s_waitcnt vmcnt(0)")
    slow_mf()
    for q, Sx in ((0, SA), (1, SB)):
        for i in range(8): A(f"v_max3_f32 v{28+q}, v{Sx+2*i}, v{Sx+2*i+1}, v{28+q}")
    A("""
    s_add_u32 s4, s4, 1
    s_cmp_lt_u32 s4, 64
    s_cbranch_scc1 P2_SLOW1
    v_mov_b32 v32, v28
    v_mov_b32 v33, v28
    v_mov_b32 v34, v29
    v_mov_b32 v35, v29
    s_nop 1
    v_permlane32_swap_b32 v32, v33
    v_permlane32_swap_b32 v34, v35
    s_nop 1
    v_max_f32 v28, v32, v33
    v_max_f32 v29, v34, v35
    s_mov_b32 s4, 0
    """)
    for i in range(32): A(f"v_mov_b32 v{O[0]+i}, 0")
    A("P2_SLOW2:")
    slow_qk()
    A(f"buffer_load_dwordx4 {vr(V,4)}, v9, {sr(SV,4)}, 0 offen sc1")
    A(f"buffer_load_dwordx4 {vr(V+4,4)}, v9, {sr(SV,4)}, 0 offen offset:640 sc1")
    A("v_add_u32 v9, v9, v30")
    A("s_waitcnt vmcnt(0)")
    slow_mf()
    for q, Sx in ((0, SA), (1, SB)):
        for i in range(16): A(f"v_sub_f32 v{Sx+i}, v{Sx+i}, v{28+q}")
        for i in range(16): A(f"v_exp_f32 v{Sx+i}, v{Sx+i}")
        A("s_nop 0")
        for i in range(8): A(f"v_cvt_pk_bf16_f32 v{Sx+i}, v{Sx+2*i}, v{Sx+2*i+1}")
        A("s_nop 1")
        A(f"v_mfma_f32_32x32x16_bf16 {vr(O[q],16)}, {vr(V,4)}, {vr(Sx,4)}, {vr(O[q],16)}")
        A(f"v_mfma_f32_32x32x16_bf16 {vr(O[q],16)}, {vr(V+4,4)}, {vr(Sx+4,4)}, {vr(O[q],16)}")
    A("""
    s_add_u32 s4, s4, 1
    s_cmp_lt_u32 s4, 64
    s_cbranch_scc1 P2_SLOW2
    s_nop 15
    s_branch P2_FIN
    """)
```

```python
from common import *
RS = 336
WSZ = 64 * RS
def ar(a, n=1): return f"a{a}" if n == 1 else f"a[{a}:{a+n-1}]"
DA = 4
PW = int(os.environ.get("P3PW", "4"))
DW = 10
ACC = 40
def acc(i, j): return ACC + 4 * (5 * i + j)
AR0 = 120
def aring(p): return AR0 + 16 * (p % DA)
def wring(p): return 20 * (p % DW)
VA = 8; VA2 = 17; VX = 26; OMG = 30
NS = 17

def gen_p3(A):
    A("P3_SETUP:")
    A(f"""
    s_load_dwordx2 s[8:9], s[0:1], 64
    s_lshr_b32 s37, s6, 1
    s_lshl_b32 s37, s37, 3
    s_and_b32 s41, s7, 7
    s_add_u32 s37, s37, s41
    s_and_b32 s38, s6, 1
    s_lshl_b32 s38, s38, 2
    s_lshr_b32 s42, s7, 3
    s_add_u32 s38, s38, s42
    v_lshrrev_b32 v2, 4, v1
    v_and_b32 v3, 15, v1
    v_lshlrev_b32 v4, 4, v3
    v_lshl_add_u32 v5, v2, 9, v4
    s_mul_i32 s45, s36, {24*1024}
    s_mul_i32 s46, s37, {2*96*1024}
    s_add_u32 s46, s46, s45
    s_add_u32 s46, s46, {WS_H:#x}
    """)
    for i in range(4):
        A(f"s_add_u32 s47, s46, {(i//2)*96*1024 + (i%2)*256}")
        A(f"v_add_u32 v{VA+i}, s47, v5")
    A(f"s_mul_i32 s48, s38, 5")
    for j in range(5):
        A(f"""
        s_add_u32 s47, s48, {j}
        s_and_b32 s49, s47, 1
        s_lshl_b32 s49, s49, 8
        s_lshr_b32 s47, s47, 1
        s_mul_i32 s50, s47, {96*1024}
        s_add_u32 s50, s50, s49
        s_add_u32 s50, s50, s45
        s_add_u32 s50, s50, {WS_WD:#x}
        v_add_u32 v{VA+4+j}, s50, v5
        s_mul_i32 s50, s47, {40*1024}
        s_add_u32 s50, s50, s49
        s_add_u32 s50, s50, {WS_WO:#x}
        v_add_u32 v{VA2+4+j}, s50, v5
        """)
    A.c("poll addresses: lanes 0-15 the GEGLU producers of row block tr/2, lanes 16-47 the attention producers of q block tr/4")
    A(f"""
    s_lshr_b32 s47, s37, 1
    s_and_b32 s49, s47, 7
    s_lshl_b32 s49, s49, 3
    s_lshr_b32 s47, s47, 3
    s_lshl_b32 s47, s47, 2
    s_add_u32 s47, s47, s49
    v_and_b32 v186, 3, v1
    v_lshlrev_b32 v186, 6, v186
    v_lshrrev_b32 v187, 2, v1
    v_add_u32 v186, v186, v187
    v_add_u32 v186, s47, v186
    s_lshr_b32 s47, s37, 2
    s_and_b32 s49, s47, 3
    s_lshl_b32 s49, s49, 3
    s_lshr_b32 s47, s47, 2
    s_lshl_b32 s47, s47, 2
    s_add_u32 s47, s47, s49
    v_subrev_u32 v187, 16, v1
    v_min_u32 v187, 31, v187
    v_and_b32 v188, 7, v187
    v_lshlrev_b32 v188, 5, v188
    v_lshrrev_b32 v187, 3, v187
    v_add_u32 v187, v187, v188
    v_add_u32 v187, s47, v187
    v_cmp_gt_u32 vcc, 16, v1
    s_mov_b32 s15, {WS_F + 32768:#x}
    s_lshl_b32 s45, s36, 13
    v_cndmask_b32 v186, v187, v186, vcc
    v_lshlrev_b32 v186, 7, v186
    s_lshl_b32 s68, s36, 11
    s_add_u32 s68, s68, {32*1024}
    """)
    publish(A, "P3_NOFLAG", WS_F + 32768, 200)
    mst(A, "f2")
    seq = []
    def issue_w(i):
        r = wring(i)
        for k in range(5):
            if i < 12: A(f"buffer_load_dwordx4 {ar(r+4*k,4)}, v{VA+4+k}, s[28:31], s{52+i//2} offen offset:{(i%2)*2048} sc1")
            elif i < 16: A(f"buffer_load_dwordx4 {ar(r+4*k,4)}, v{VA2+4+k}, s[28:31], s{60+(i-12)//2} offen offset:{(i%2)*2048} sc1")
            else: A(f"buffer_load_dwordx4 {ar(r+4*k,4)}, v{VA2+4+k}, s[28:31], s68 offen sc1")
            seq.append(("W", i))
    def issue_a(i):
        r = aring(i)
        for k in range(4):
            if i < 12:
                A(f"buffer_load_dwordx4 {vr(r+4*k,4)}, v{VA+k}, s[28:31], s{52+i//2} offen offset:{(i%2)*2048} sc1"); seq.append(("A", i))
            elif i < 16:
                A(f"buffer_load_dwordx4 {vr(r+4*k,4)}, v{VA2+k}, s[28:31], s{62+i-12} offen sc1"); seq.append(("A", i))
            else:
                A(f"buffer_load_dwordx2 {vr(r+4*k,2)}, v{VX+k}, s[28:31], 0 offen offset:1024 sc1")
                A(f"buffer_load_dwordx2 {vr(r+4*k+2,2)}, v{VX+k}, s[28:31], 0 offen offset:2304 sc1")
                seq.append(("A", i)); seq.append(("A", i))
    for i in range(6): A(f"s_movk_i32 s{52+i}, {4096*i}")
    A("s_mov_b32 s60, s45")
    A("s_add_u32 s61, s45, 4096")
    for k in range(4): A(f"s_movk_i32 s{62+k}, {2560*k}")
    for i in range(PW): issue_w(i)
    A.c("phase-2 addresses, reduction addresses")
    A(f"""
    v_lshrrev_b32 v6, 1, v2
    v_mul_u32_u24 v6, 1280, v6
    v_and_b32 v7, 1, v2
    v_lshl_add_u32 v6, v7, 9, v6
    v_add_u32 v6, v6, v4
    v_mul_u32_u24 v7, 2560, v2
    v_lshl_add_u32 v7, v3, 3, v7
    s_mul_i32 s46, s37, {2*40960}
    s_mul_i32 s47, s36, {8*1280}
    s_add_u32 s46, s46, s47
    s_add_u32 s46, s46, {WS_O:#x}
    """)
    for i in range(4):
        A(f"s_add_u32 s47, s46, {(i//2)*40960 + (i%2)*256}")
        A(f"v_add_u32 v{VA2+i}, s47, v6")
        A(f"s_add_u32 s47, s46, {(i//2)*40960 + (i%2)*128}")
        A(f"v_add_u32 v{VX+i}, s47, v7")
    A(f"""
    v_mul_u32_u24 v34, {RS}, v3
    v_lshl_add_u32 v34, v2, 4, v34
    s_mul_i32 s42, s36, {WSZ}
    v_add_u32 v34, s42, v34
    s_mul_i32 s42, s37, {64*1280}
    s_mul_i32 s43, s38, 160
    s_add_u32 s42, s42, s43
    s_lshl_b32 s47, s37, 8
    s_add_u32 s47, s47, {WS_G + 8192:#x}
    v_lshlrev_b32 v6, 2, v3
    """)
    for i in range(5):
        A(f"""
        v_add_u32 v35, {256*i}, v0
        v_mul_u32_u24 v36, 3277, v35
        v_lshrrev_b32 v36, 16, v36
        v_mul_u32_u24 v37, 20, v36
        v_sub_u32 v37, v35, v37
        v_mul_u32_u24 v38, {RS}, v36
        v_lshl_add_u32 v{190+i}, v37, 4, v38
        v_mul_u32_u24 v38, 1280, v36
        v_lshl_add_u32 v{195+i}, v37, 3, v38
        """)
    for i in range(4):
        A(f"buffer_load_dword v{OMG+i}, v6, s[28:31], s47 offen offset:{64*i} sc1"); seq.append(("g", i))
    A("s_waitcnt lgkmcnt(0)")
    srd(A, 32, 8, 2048 * 1280)
    poll(A, "SYNC2", "buffer_load_dword v187, v186, s[28:31], s15 offen sc1", 187, "1")
    mst(A, "s2")
    nw = PW
    for i in range(DA):
        issue_a(i)
        if nw <= i: issue_w(nw); nw += 1
    for i in range(NS):
        need = max(k for k, x in enumerate(seq) if x in (("A", i), ("W", i)))
        A(f"s_waitcnt vmcnt({len(seq) - 1 - need})")
        if i == 12:
            A("s_nop 7")
            for ii in range(4):
                for k in range(10): A(f"v_pk_mul_f32 {vr(acc(ii,0)+2*k,2)}, {vr(acc(ii,0)+2*k,2)}, {vr(OMG+ii - (ii&1),2)} op_sel:[0,{ii&1}] op_sel_hi:[1,{ii&1}]")
            A("s_nop 1")
        for ii in range(4):
            for j in range(5):
                c = "0" if i == 0 else vr(acc(ii, j), 4)
                A(f"v_mfma_f32_16x16x32_bf16 {vr(acc(ii,j),4)}, {ar(wring(i)+4*j,4)}, {vr(aring(i)+4*ii,4)}, {c}")
        if i + DA < NS:
            issue_a(i + DA)
            if nw <= i + DA and nw < NS: issue_w(nw); nw += 1
    A("s_nop 7")
    for ii in range(4):
        for j in range(5):
            A(f"ds_write_b128 v34, {vr(acc(ii,j),4)} offset:{ii*16*RS + j*64}")
    A("""
    s_waitcnt lgkmcnt(0)
    s_barrier
    """)
    for i in range(5):
        for w in range(4):
            A(f"ds_read_b128 {vr(ACC+16*i+4*w,4)}, v{190+i} offset:{w*WSZ}")
    for i in range(5):
        b = ACC + 16 * i
        A(f"s_waitcnt lgkmcnt({min(15, 16-4*i)})" if i < 4 else "s_waitcnt lgkmcnt(0)")
        for k in range(2):
            A(f"v_pk_add_f32 {vr(b+2*k,2)}, {vr(b+2*k,2)}, {vr(b+4+2*k,2)}")
            A(f"v_pk_add_f32 {vr(b+8+2*k,2)}, {vr(b+8+2*k,2)}, {vr(b+12+2*k,2)}")
        for k in range(2):
            A(f"v_pk_add_f32 {vr(b+2*k,2)}, {vr(b+2*k,2)}, {vr(b+8+2*k,2)}")
        A(f"v_cvt_pk_bf16_f32 v{b+4}, v{b}, v{b+1}")
        A(f"v_cvt_pk_bf16_f32 v{b+5}, v{b+2}, v{b+3}")
        A(f"buffer_store_dwordx2 {vr(b+4,2)}, v{195+i}, s[32:35], s42 offen")
```

```python
import sys
from common import *
import p1, p2, p3
HDR = open('cdna_kernels/%s.s.ref' % NAME).read().split('; Override launch')[0]
KN = NAME + "_kernel"
def build(aslist=False):
    A = Asm()
    name = "mk_kernel" if aslist else KN
    kernel_header(A, name)
    mst(A, "start"); mst(A, "rt0")
    A("s_cmp_ge_u32 s2, 256")
    A("s_cbranch_scc1 MK_END")
    def done(kind):
        if kind == "aux":
            A.c("arrive on the aux counter; the last arriver opens the gate word")
            A("""
            s_load_dwordx2 s[74:75], s[0:1], 72
            v_mov_b32 v17, 0
            v_mov_b32 v18, 1
            s_waitcnt vmcnt(0) lgkmcnt(0)
            s_barrier
            s_cmp_lg_u32 s36, 0
            s_cbranch_scc1 P1_AUX_NOFLAG
            s_mov_b64 exec, 1
            global_atomic_add v19, v17, v18, s[74:75] sc0 sc1
            s_waitcnt vmcnt(0)
            v_cmp_eq_u32 vcc, 63, v19
            s_and_b64 exec, exec, vcc
            s_cbranch_execz P1_AUX_NOTLAST
            global_store_dword v17, v18, s[74:75] offset:128 sc1
            P1_AUX_NOTLAST:
            s_mov_b64 exec, -1
            P1_AUX_NOFLAG:
            """)
            if p1.TOUCH: p1.touch_gu(A)
        else:
            A("s_branch P2_SETUP")
    p1.gen_p1(A, done)
    A("P2_SETUP:")
    p2.gen_p2_setup(A)
    A.c("the flags may be used once the aux workgroups have cleared them")
    A("v_mov_b32 v18, 0")
    poll(A, "SYNC0", "global_load_dword v17, v18, s[74:75] offset:128 sc1", 17, "1", barrier=False)
    publish(A, "P2_NOFLAG", WS_F, 40)
    mst(A, "f1")
    p2.gen_p2_main(A)
    A.L.pop()
    p3.gen_p3(A)
    if STAMP: A("s_waitcnt vmcnt(0)")
    mst(A, "end"); mst(A, "rt1")
    stamp_store(A, 11, 36, 0, vt=35, base=80)
    A("MK_END:")
    A("s_endpgm")
    p2.slow(A)
    A.L.append(f""".section .rodata,"a"
.p2align 6
.amdhsa_kernel {name}
  .amdhsa_next_free_vgpr {244 + 200}
  .amdhsa_next_free_sgpr 102
  .amdhsa_accum_offset 244
  .amdhsa_group_segment_fixed_size 0
  .amdhsa_kernarg_size 88
  .amdhsa_user_sgpr_count 2
  .amdhsa_user_sgpr_kernarg_segment_ptr 1
  .amdhsa_system_sgpr_workgroup_id_x 1
.end_amdhsa_kernel""")
    la = f"; @launch kernel=mk_kernel grid=(256,1,1) block=(256,1,1) lds={p2.P2_LDS}" if aslist else f"; @launch grid=(256,1,1) block=(256,1,1) lds={p2.P2_LDS}"
    return HDR + la + '\n.amdgcn_target "amdgcn-amd-amdhsa--gfx950"\n' + A.text()
if __name__ == "__main__":
    open(sys.argv[1], "w").write(build(aslist=(len(sys.argv) > 2)))
```

```python
import math, struct

NAME = "gated_mix__softmax_full_mha__glu_gated_geglu__prompt"
WS_Q  = 0x0000000
WS_K  = 0x0280000
WS_V  = 0x0510000
VHEAD = 64 * 1280
WS_ONES = WS_V - 8192
WS_H  = 0x0900000
WS_O  = 0x0F00000
WS_WD = 0x1180000
WS_WO = WS_WD + 1920 * 1024
WS_G  = 0x1480000
WS_F  = 0x1490000
WS_B  = 0x1500000
WS_SIZE = 0x2000000

def f2u(x):
    return struct.unpack("<I", struct.pack("<f", x))[0]

LOG2E = 1.4426950408889634
QSCALE = LOG2E / math.sqrt(20.0)

class Asm:
    def __init__(self):
        self.L = []
    def __call__(self, s, *a):
        for line in s.split("\n"):
            line = line.strip()
            if not line: continue
            if line.endswith(":") or line.startswith("."):
                self.L.append(line)
            else:
                self.L.append("    " + line)
    def c(self, s):
        self.L.append("    ; " + s)
    def text(self):
        return "\n".join(self.L) + "\n"

def vr(a, n=1):
    return f"v{a}" if n == 1 else f"v[{a}:{a+n-1}]"
def sr(a, n=1):
    return f"s{a}" if n == 1 else f"s[{a}:{a+n-1}]"

def kernel_header(A, name):
    A(f""".text
.globl {name}
.p2align 8
.type {name},@function
{name}:""")

def kernel_desc(A, name, nvgpr, nsgpr=96):
    acc = (nvgpr + 3) // 4 * 4
    A.L.append(f""".section .rodata,"a"
.p2align 6
.amdhsa_kernel {name}
  .amdhsa_next_free_vgpr {nvgpr}
  .amdhsa_next_free_sgpr {nsgpr}
  .amdhsa_accum_offset {acc}
  .amdhsa_group_segment_fixed_size 0
  .amdhsa_kernarg_size 88
  .amdhsa_user_sgpr_count 2
  .amdhsa_user_sgpr_kernarg_segment_ptr 1
  .amdhsa_system_sgpr_workgroup_id_x 1
.end_amdhsa_kernel""")

def srd(A, d, base, nbytes):
    A(f"s_mov_b32 s{d}, s{base}")
    A(f"s_mov_b32 s{d+1}, s{base+1}")
    A(f"s_mov_b32 s{d+2}, {nbytes:#x}")
    A(f"s_mov_b32 s{d+3}, 0x00020000")

WS_DBG = 0x1C00000
import os
STAMP = int(os.environ.get("STAMP", "0"))
def stamp(A, i, base=72):
    if STAMP:
        A(f"s_memtime s[{base+2*i}:{base+1+2*i}]")
def stamp_rt(A, i, base=72):
    if STAMP:
        A(f"s_memrealtime s[{base+2*i}:{base+1+2*i}]")
def stamp_store(A, n, wave_sgpr, kidx, srd=28, vt=250, base=72):
    if not STAMP: return
    A("s_waitcnt lgkmcnt(0)")
    if os.environ.get("DBGSTAMP"):
        A("s_load_dwordx2 s[0:1], s[0:1], 72")
        A("s_waitcnt lgkmcnt(0)")
        A(f"s_sub_u32 s0, s0, {512*kidx}")
        A("s_subb_u32 s1, s1, 0")
        A("s_mov_b64 exec, 1")
        A(f"s_cmp_lg_u32 s{wave_sgpr}, 0")
        A(f"s_cbranch_scc1 DBG_SKIP_{kidx}_{len(A.L)}")
        lab = f"DBG_SKIP_{kidx}_{len(A.L)-1}"
        for rep in range(3):
            A(f"v_mov_b32 v{vt}, {512*rep}")
            A(f"s_not_b32 s3, s{base+8}")
            A(f"v_mov_b32 v{vt+1}, s3")
            A(f"global_atomic_umax v{vt}, v{vt+1}, s[0:1] offset:{kidx*16}")
            A(f"v_mov_b32 v{vt+1}, s{base+10}")
            A(f"global_atomic_umax v{vt}, v{vt+1}, s[0:1] offset:{kidx*16+4}")
            for i in (1, 2):
                A(f"s_sub_u32 s3, s{base+2*i}, s{base}")
                A(f"v_mov_b32 v{vt+1}, s3")
                A(f"global_atomic_umax v{vt}, v{vt+1}, s[0:1] offset:{kidx*16+4+4*i}")
        A(lab + ":")
        return
    A(f"s_lshl_b32 s3, s2, 4")
    A(f"s_add_u32 s3, s3, s{wave_sgpr}")
    A(f"s_lshl_b32 s3, s3, 6")
    A(f"s_add_u32 s3, s3, {WS_DBG + kidx*0x40000:#x}")
    A(f"v_mov_b32 v{vt}, 0")
    A(f"s_getreg_b32 s0, hwreg(HW_REG_XCC_ID)")
    A(f"v_mov_b32 v{vt+1}, s0")
    A(f"buffer_store_dword v{vt+1}, v{vt}, s[{srd}:{srd+3}], s3 offen offset:60")
    A("s_nop 1")
    for i in range(n):
        A(f"v_mov_b32 v{vt+1}, s{base+2*i}")
        A(f"buffer_store_dword v{vt+1}, v{vt}, s[{srd}:{srd+3}], s3 offen offset:{4*i}")
        A("s_nop 1")

def srd_off(A, d, base, off_sgpr, nbytes):
    A(f"s_add_u32 s{d}, s{base}, {off_sgpr}")
    A(f"s_addc_u32 s{d+1}, s{base+1}, 0")
    A(f"s_mov_b32 s{d+2}, {nbytes}")
    A(f"s_mov_b32 s{d+3}, 0x00020000")

MST = {"start": 0, "p1b0": 1, "p1end": 2, "end": 3, "rt0": 4, "rt1": 5, "f1": 6, "s1": 7, "p2loop": 8, "f2": 9, "s2": 10}
def mst(A, name):
    if not STAMP: return
    if os.environ.get("ST3"):
        if name in ("p1b0", "p1end", "f1"): return
        name = {"p3w": "p1b0", "p3mid": "p1end", "p3loop": "f1"}.get(name, name)
    elif name in ("p3w", "p3mid", "p3loop"): return
    i = MST[name]
    A(f"{'s_memrealtime' if (name in ('rt0', 'rt1') or STAMP == 2) else 's_memtime'} s[{80+2*i}:{81+2*i}]")
    A("s_waitcnt lgkmcnt(0)")
SPIN = 1 << 20
SLEEP = int(os.environ.get('SLEEP', '2'))
def poll(A, lab, load, vreg, want, sc=3, barrier=True):
    A(f"""
    s_cmp_lg_u32 s36, 0
    s_cbranch_scc1 {lab}_DONE
    s_mov_b32 s{sc}, {SPIN}
    {lab}_SPIN:
    {load}
    s_waitcnt vmcnt(0)
    v_cmp_ne_u32 vcc, {want}, v{vreg}
    s_sub_u32 s{sc}, s{sc}, 1
    s_cbranch_scc1 {lab}_DONE
    s_cbranch_vccz {lab}_DONE
    s_sleep {SLEEP}
    s_branch {lab}_SPIN
    {lab}_DONE:
    """)
    if barrier: A("s_barrier")

def publish(A, lab, base, vt, younger=0, extra=""):
    A(f"""
    s_lshl_b32 s3, s2, 7
    s_add_u32 s3, s3, {base:#x}
    v_lshlrev_b32 v{vt}, 4, v0
    v_mov_b32 v{vt+2}, 1
    v_mov_b32 v{vt+3}, 1
    v_mov_b32 v{vt+4}, 1
    v_mov_b32 v{vt+5}, 1
    s_waitcnt vmcnt({younger}){extra}
    s_barrier
    s_cmp_lg_u32 s36, 0
    s_cbranch_scc1 {lab}
    s_mov_b64 exec, 0xff
    buffer_store_dwordx4 v[{vt+2}:{vt+5}], v{vt}, s[28:31], s3 offen sc1
    s_mov_b64 exec, -1
    {lab}:
    """)
```
